```python
import torch

def _softmax(x, axis=-1):
    return torch.softmax(x, dim=axis)

def _gelu(x):
    return torch.nn.functional.gelu(x, approximate='tanh')

def _silu(x):
    return torch.nn.functional.silu(x)

def _sigmoid(x):
    return torch.sigmoid(x)

def _layernorm(x, axis=-1, eps=1e-05):
    m = x.mean(dim=axis, keepdim=True)
    v = x.var(dim=axis, keepdim=True, unbiased=False)
    return (x - m) / torch.sqrt(v + eps)

def _scatter_add(tgt, idx, src, axis=0):
    return tgt.clone().index_add_(axis, idx, src)

def _segment_sum(src, seg, n):
    out = torch.zeros((n,) + src.shape[1:], dtype=src.dtype)
    return out.index_add_(0, seg, src)

def _pad(x, pw):
    flat = tuple((v for pair in reversed(pw) for v in pair))
    return torch.nn.functional.pad(x, flat)
kernel_name = 'interleave_layers__memory_aug_recurrent_mem_tr__mixer_token_mlp__prompt'

def setup_inputs():

    _w = lambda a: (lambda t: t.to(torch.bfloat16) if t.is_floating_point() else t)(torch.as_tensor(a))

    def _A_setup():
        B, S, Dm = (1, 2048, 640)
        H, Dh = (32, 192)
        M, seg = (8, 32)
        seg = min(seg, S)
        S = S // seg * seg
        return {'x': _w((lambda *s: torch.randn(*s, dtype=torch.bfloat16) * 0.05)(B, S, Dm)), 'mem0': _w((lambda *s: torch.randn(*s, dtype=torch.bfloat16) * 0.2)(B, M, Dm)), 'Wq': _w((lambda *s: torch.randn(*s, dtype=torch.bfloat16) * 0.8)(Dm, H, Dh) * Dm ** (-0.5)), 'Wk': _w((lambda *s: torch.randn(*s, dtype=torch.bfloat16) * 0.8)(Dm, H, Dh) * Dm ** (-0.5)), 'Wv': _w((lambda *s: torch.randn(*s, dtype=torch.bfloat16) * 0.2)(Dm, H, Dh) * Dm ** (-0.5)), 'Wo': _w((lambda *s: torch.randn(*s, dtype=torch.bfloat16) * 0.2)(H, Dh, Dm) * (H * Dh) ** (-0.5)), 'seg_len': seg}
    _A_in = _A_setup()

    def _B_setup():
        B, S, D, F = (1, 2048, 640, 1536)
        return {'x': _w((lambda *s: torch.randn(*s, dtype=torch.bfloat16) * 0.05)(B, S, D)), 'w1': _w((lambda *s: torch.randn(*s, dtype=torch.bfloat16) * 0.2)(S, F) * S ** (-0.5)), 'b1': _w((lambda *s: torch.randn(*s, dtype=torch.bfloat16) * 3.2)(F) * 0.02), 'w2': _w((lambda *s: torch.randn(*s, dtype=torch.bfloat16) * 0.1)(F, S) * F ** (-0.5)), 'b2': _w((lambda *s: torch.randn(*s, dtype=torch.bfloat16) * 0.2)(S) * 0.02)}
    _B_in = _B_setup()
    return {'A_x': _A_in['x'], 'A_mem0': _A_in['mem0'], 'A_Wq': _A_in['Wq'], 'A_Wk': _A_in['Wk'], 'A_Wv': _A_in['Wv'], 'A_Wo': _A_in['Wo'], 'A_seg_len': _A_in['seg_len'], 'B_x': _B_in['x'], 'B_w1': _B_in['w1'], 'B_b1': _B_in['b1'], 'B_w2': _B_in['w2'], 'B_b2': _B_in['b2']}

def reference(A_x, A_mem0, A_Wq, A_Wk, A_Wv, A_Wo, A_seg_len, B_x, B_w1, B_b1, B_w2, B_b2):

    def _A_ref(x, mem0, Wq, Wk, Wv, Wo, seg_len):
        B, S, Dm = x.shape
        H, Dh = (Wq.shape[1], Wq.shape[2])
        M = mem0.shape[1]
        scale = Dh ** (-0.5)
        n_seg = S // seg_len
        L = M + seg_len
        idx = torch.arange(L)
        mask = (idx[:, None] < M) | (idx[:, None] >= idx[None, :])
        mem = mem0
        outs = []
        for s in range(n_seg):
            xs = x[:, s * seg_len:(s + 1) * seg_len, :].clone()
            h = torch.concatenate([mem, xs], axis=1)
            q = torch.einsum('btd,dhe->bhte', h, Wq)
            k = torch.einsum('btd,dhe->bhte', h, Wk)
            v = torch.einsum('btd,dhe->bhte', h, Wv)
            scores = torch.einsum('bhqe,bhke->bhqk', q, k) * scale
            scores = torch.where(mask[None, None], scores, -1000000000.0)
            p = _softmax(scores, axis=-1)
            o = torch.einsum('bhqk,bhke->bhqe', p, v)
            o = torch.einsum('bhte,hed->btd', o, Wo)
            mem = o[:, :M, :].clone()
            outs.append(o[:, M:, :])
        return torch.concatenate(outs, axis=1)

    def _B_ref(x, w1, b1, w2, b2):
        B, S, D = x.shape
        h = _layernorm(x, axis=-1)
        u = torch.einsum('bsd,sf->bdf', h, w1) + b1
        u = _gelu(u)
        y = torch.einsum('bdf,fs->bds', u, w2) + b2
        return (lambda x, *d: x.permute(*d))(y, 0, 2, 1)
    x = A_x
    x = x + _A_ref(_layernorm(x, axis=-1), A_mem0, A_Wq, A_Wk, A_Wv, A_Wo, A_seg_len)
    x = x + _B_ref(_layernorm(x, axis=-1), B_w1, B_b1, B_w2, B_b2)
    x = x + _A_ref(_layernorm(x, axis=-1), A_mem0, A_Wq, A_Wk, A_Wv, A_Wo, A_seg_len)
    x = x + _B_ref(_layernorm(x, axis=-1), B_w1, B_b1, B_w2, B_b2)
    return x
```

```python
from asmlib import *
from layout import *
from chain import *
from workers import *

def preamble(a, name, force_fb=False):
    END = f"{name}_end"
    a(f"s_cmp_ge_u32 s2, 256\ns_cbranch_scc1 {END}")
    a("s_load_dwordx2 s[4:5], s[0:1], 112")
    a("s_load_dwordx2 s[6:7], s[0:1], 8")
    a("s_load_dwordx8 s[36:43], s[0:1], 16")
    a("v_and_b32 v2, 63, v0\nv_lshrrev_b32 v1, 6, v0")
    a("s_getreg_b32 s34, hwreg(HW_REG_XCC_ID)\ns_and_b32 s34, s34, 7")
    a(f"v_readfirstlane_b32 s{S_W}, v1")
    a("s_waitcnt lgkmcnt(0)")
    srd(a, S_WS, 4, WS_SIZE); srd(a, S_MEM, 6, 10240)
    srd(a, S_WQ, 36, W_BYTES); srd(a, S_WK, 38, W_BYTES); srd(a, S_WV, 40, W_BYTES); srd(a, S_WO, 42, W_BYTES)
    WS = f"s[{S_WS}:{S_WS+3}]"
    L = a.label("cen"); L2 = a.label("cen"); L3 = a.label("cen"); L4 = a.label("cen")
    a(f"s_cmp_lg_u32 s{S_W}, 0\ns_cbranch_scc1 {L}")
    a(f"s_lshl_b32 s35, s34, 8\ns_lshl_b32 s36, s{S_L}, 11\ns_add_u32 s36, s36, {CNT}\ns_add_u32 s35, s35, s36\nv_mov_b32 v3, s35\nv_mov_b32 v4, 1")
    a(f"v_lshlrev_b32 v5, 8, v2\nv_add_u32 v5, s36, v5")
    a(f"s_mov_b64 exec, 1\nbuffer_atomic_add v4, v3, {WS}, 0 offen sc0\ns_mov_b64 exec, 0xff\ns_mov_b32 s{S_TO}, {TIMEOUT}")
    a(f"{L2}:\nbuffer_load_dword v6, v5, {WS}, 0 offen sc1\ns_waitcnt vmcnt(0)")
    a(f"v_readfirstlane_b32 s{S_RANK}, v4\ns_mov_b32 s35, 0\ns_mov_b32 s3, 0")
    for x in range(8):
        a(f"v_readlane_b32 s36, v6, {x}\ns_add_u32 s35, s35, s36\ns_cmp_lg_u32 s36, 32\ns_cselect_b32 s3, 1, s3")
        a(f"s_cmp_gt_u32 s34, {x}\ns_cselect_b32 s36, s36, 0\ns_add_u32 s{S_RANK}, s{S_RANK}, s36")
    a(f"s_cmp_eq_u32 s35, 256\ns_cbranch_scc1 {L3}")
    a(f"s_sub_u32 s{S_TO}, s{S_TO}, 1\ns_cmp_lg_u32 s{S_TO}, 0\ns_cbranch_scc1 {L2}")
    a(f"s_mov_b32 s{S_RANK}, 0xffff")
    a(f"{L3}:\ns_mov_b64 exec, -1")
    if force_fb: a(f"s_mov_b32 s3, 1\ns_mov_b32 s{S_RANK}, s2")
    a(f"s_lshl_b32 s3, s3, 16\ns_or_b32 s35, s3, s{S_RANK}\nv_mov_b32 v3, 0\nv_mov_b32 v4, s35\nds_write_b32 v3, v4\ns_waitcnt lgkmcnt(0)")
    a(f"{L}:\ns_barrier\nv_mov_b32 v3, 0\nds_read_b32 v4, v3\ns_waitcnt lgkmcnt(0)\nv_readfirstlane_b32 s35, v4\ns_barrier")
    a(f"s_lshr_b32 s3, s35, 16\ns_and_b32 s{S_RANK}, s35, 0xffff")
    a(f"s_cmp_ge_u32 s{S_RANK}, 256\ns_cbranch_scc1 {END}")

def layer_a_kernel(a, names, opt):
    name = "la"
    for l, n in reversed(list(enumerate(names))):
        kernel_begin(a, n)
        a(f"s_mov_b32 s{S_L}, {l}")
        if l: a("s_branch la_body")
    a("la_body:")
    preamble(a, name, opt.get("force_fb", False))
    END = f"{name}_end"
    lab = {k: f"{name}_{k}" for k in ("wk", "att", "fb", "K", "V", "Q")}
    def far(cond, target):
        n = a.label("near")
        a(f"{cond} {n}\ns_branch {target}\n{n}:")
    a(f"s_and_b32 s35, s{S_RANK}, 31\ns_cmp_ge_u32 s{S_RANK}, 128\ns_cbranch_scc1 {lab['wk']}\ns_cmp_ge_u32 s35, 24\ns_cbranch_scc1 {lab['att']}")
    a(f"s_cmp_lg_u32 s3, 0\ns_cbranch_scc1 {lab['fb']}")
    o = dict(opt, flags=1)
    emit_chain(a, name + "n", False, o)
    a(f"{lab['fb']}:"); emit_chain(a, name + "f", True, o)
    a(f"{lab['att']}:"); emit_att(a, name + "a")
    a(f"{lab['wk']}:")
    a(f"s_cmp_lt_u32 s35, 8\ns_cbranch_scc1 {lab['K']}\ns_cmp_lt_u32 s35, 16\ns_cbranch_scc1 {lab['V']}\ns_cmp_lt_u32 s35, 24\ns_cbranch_scc1 {lab['Q']}")
    emit_oproj(a, name + "o")
    for k in "KVQ":
        a(f"{lab[k]}:"); emit_proj(a, name + k, k)
    a(f"{END}:\ns_endpgm")
    for n in names: kernel_desc(a, n, 256, accum=256, agpr=256)

def gen_a_test(opt):
    a = Asm()
    a.lines.append("; @launch kernel=la_kernel grid=(256,1,1) block=(256,1,1) lds=163840")
    a('.amdgcn_target "amdgcn-amd-amdhsa--gfx950"')
    layer_a_kernel(a, ["la_kernel"], opt)
    return a.text()

if __name__ == "__main__":
    open("a_test.s", "w").write(gen_a_test(dict(stamps=1, oflag=2, pflag=2, mflag=0, lgap=8)))
```

```python
class Asm:
    def __init__(self):
        self.lines = []
        self.uid = 0
    def __call__(self, s=""):
        for ln in s.split("\n"):
            ln = ln.strip()
            if not ln:
                continue
            if ln.endswith(":") or ln.startswith("."):
                self.lines.append(ln)
            else:
                self.lines.append("  " + ln)
    def label(self, base):
        self.uid += 1
        return f"L_{base}_{self.uid}"
    def text(self):
        return "\n".join(self.lines) + "\n"

def vr(b, n=1):
    return f"v{b}" if n == 1 else f"v[{b}:{b+n-1}]"
def ar(b, n=1):
    return f"a{b}" if n == 1 else f"a[{b}:{b+n-1}]"
def sr(b, n=1):
    return f"s{b}" if n == 1 else f"s[{b}:{b+n-1}]"

def kernel_begin(a, name):
    a(".text")
    a(f".globl {name}")
    a(".p2align 8")
    a(f".type {name},@function")
    a(f"{name}:")

def kernel_desc(a, name, vgpr, sgpr=102, accum=None, agpr=0):
    if accum is None:
        accum = (vgpr + 3) // 4 * 4
    nfv = accum + agpr if agpr else vgpr
    a('.section .rodata,"a"')
    a(".p2align 6")
    a(f".amdhsa_kernel {name}")
    a(f".amdhsa_next_free_vgpr {nfv}")
    a(f".amdhsa_next_free_sgpr {sgpr}")
    a(f".amdhsa_accum_offset {accum}")
    a(".amdhsa_group_segment_fixed_size 0")
    a(".amdhsa_kernarg_size 120")
    a(".amdhsa_user_sgpr_count 2")
    a(".amdhsa_user_sgpr_kernarg_segment_ptr 1")
    a(".amdhsa_system_sgpr_workgroup_id_x 1")
    a(".amdhsa_float_denorm_mode_32 3")
    a(".amdhsa_float_denorm_mode_16_64 3")
    a(".end_amdhsa_kernel")

def srd(a, d, lo, nbytes):
    a(f"s_mov_b32 s{d}, s{lo}")
    a(f"s_and_b32 s{d+1}, s{lo+1}, 0xffff")
    a(f"s_mov_b32 s{d+2}, {nbytes}")
    a(f"s_mov_b32 s{d+3}, 0x00020000")
```

```python
from asmlib import *
from layout import *
import math, struct

S_PTR = 4
S_WS = 8; S_WQ = 12; S_WK = 16; S_WV = 20; S_WO = 24; S_MEM = 28
S_W = 32; S_RANK = 33
T0, T1, T2, T3 = 60, 61, 62, 63
S_L = 65
S_TO = 64
TIMEOUT = 400000
LANE = 2
WS = f"s[{S_WS}:{S_WS+3}]"

def f2u(x): return struct.unpack("<I", struct.pack("<f", x))[0]

class Ctx:
    def __init__(self, a, name):
        self.a = a; self.name = name
    def lab(self, b): return self.a.label(self.name + "_" + b)

def saddr(a, dst, terms):
    c = sum(t for t in terms if isinstance(t, int))
    a(f"s_mov_b32 s{dst}, {c & 0xffffffff}")
    for t in terms:
        if not isinstance(t, int):
            a(f"s_mul_i32 s{T3}, s{t[0]}, {t[1]}\ns_add_u32 s{dst}, s{dst}, s{T3}")

def vexpr(a, dst, fields, terms=(), tmp=1):
    first = True
    for (sh, bits, mul) in fields:
        d = dst if first else tmp
        a(f"v_bfe_u32 v{d}, v{LANE}, {sh}, {bits}")
        a(f"v_mul_u32_u24 v{d}, {mul}, v{d}")
        if not first: a(f"v_add_u32 v{dst}, v{dst}, v{tmp}")
        first = False
    if terms:
        saddr(a, T0, terms); a(f"v_add_u32 v{dst}, s{T0}, v{dst}")

def keep(a, dst, cond, tmp=1, other=OOB):
    a(cond); a(f"v_mov_b32 v{tmp}, {other}\ns_nop 0\nv_cndmask_b32 v{dst}, v{tmp}, v{dst}, vcc")
def keepbit(a, dst, bit, want, tmp=1):
    keep(a, dst, f"v_bfe_u32 v{tmp}, v{LANE}, {bit}, 1\nv_cmp_eq_u32 vcc, {want}, v{tmp}", tmp)
def smod(a, r, n, times=1):
    for _ in range(times): a(f"s_sub_u32 s{T3}, s{r}, {n}\ns_cmp_ge_u32 s{r}, {n}\ns_cselect_b32 s{r}, s{T3}, s{r}")
def nop(a, n):
    while n > 0:
        k = min(n, 16); a(f"s_nop {k-1}"); n -= k

def emit_chain(a, name, fb, opt):
    c = Ctx(a, name)
    isc = "sc1" if fb else ""
    stamps = opt.get("stamps", 0); flags = opt.get("flags"); nocheck = opt.get("nocheck")
    oflag = opt.get("oflag"); mflag = opt.get("mflag"); xflag = opt.get("xflag")
    NSEG = 64
    sG, sJ, sH, sT, sX, sJF, sGL, sS = 34, 35, 36, 37, 38, 39, 40, 41
    sI0, sI1, sI2, sI3 = 42, 43, 44, 45
    sP0, sPc, sKV, sKM, sFLIP, sPOL, sSEQ, sC = 46, 47, 48, 49, 50, 51, 52, 53
    sB = 54
    sGF, sJH, sJS = 57, 58, 59
    sOWN, sFM, sXB, sXV, sXO = 66, 68, 70, 88, 96
    ST = 72
    def stamp(i):
        if stamps and (i == 0 or i in opt.get("sel", range(8))): a(f"s_memtime s[{ST+2*i}:{ST+2*i+1}]")
    a(f"s_lshr_b32 s{sX}, s{S_RANK}, 5\ns_and_b32 s{sJ}, s{S_RANK}, 31")
    a(f"s_cmp_ge_u32 s{sJ}, 12\ns_cselect_b32 s{sGL}, 1, 0"); smod(a, sJ, 12)
    a(f"s_lshl_b32 s{sG}, s{sX}, 1\ns_add_u32 s{sG}, s{sG}, s{sGL}\ns_xor_b32 s{sGF}, s{sG}, 1")
    a(f"s_mul_i32 s{T0}, s{sJ}, 86\ns_lshr_b32 s{T0}, s{T0}, 8")
    a(f"s_mul_i32 s{T1}, s{T0}, 3\ns_sub_u32 s{sT}, s{sJ}, s{T1}")
    a(f"s_lshl_b32 s{sH}, s{sG}, 2\ns_add_u32 s{sH}, s{sH}, s{T0}")
    a(f"s_sub_u32 s{T0}, s{sJ}, 2\ns_cmp_ge_u32 s{sJ}, 10\ns_cselect_b32 s{sJF}, s{T0}, s{sJ}")
    a(f"s_add_u32 s{sJH}, s{sJF}, 5"); smod(a, sJH, 10)
    a(f"s_cmp_ge_u32 s{sJ}, 10\ns_cselect_b32 s{sJS}, s{sJ}, s{sJH}")
    a(f"s_mov_b32 s{sB}, 0xff00ff00\ns_mov_b32 s{sB+1}, s{sB}\ns_not_b32 s{T0}, s{sB}\ns_cmp_eq_u32 s{sGL}, 0\ns_cselect_b32 s{sOWN}, s{sB}, s{T0}\ns_mov_b32 s{sOWN+1}, s{sOWN}")
    def rot(ph, n):
        a(f"s_mul_i32 s{T0}, s{S_W}, 3\ns_min_u32 s{T0}, s{T0}, {n-3}\ns_add_u32 s{T0}, s{T0}, {ph}")
        if n == 10: a(f"s_add_u32 s{T0}, s{T0}, s{sJH}")
        smod(a, T0, n, 2 if n == 10 else 1)
    WA_QK, WA_O, WV_V = 0, 160, 176
    vDQ, vDO, vTR = 3, 4, 5
    vexpr(a, vDQ, [(3, 3, 12288), (0, 3, 16)], [(sH, 384), (sT, 128), (S_W, 8 * 12288)])
    vexpr(a, vDO, [(3, 3, 1280), (0, 3, 16)], [(sGF, 768 * 1280), (sJF, 128), (S_W, 8 * 1280)])
    vexpr(a, vTR, [(4, 1, 16 * 128), (5, 1, 4 * 128), (3, 1, 32 * 128), (2, 1, 128), (0, 2, 8)], [(S_W, 32)])
    def dma(srd_, vsrc, rowbytes, k0, k1, ldsbase):
        a(f"s_lshl_b32 s{T1}, s{S_W}, 10")
        for k in range(k0, k1):
            a(f"s_add_u32 m0, s{T1}, {ldsbase + (k - k0) * 4096}")
            a(f"s_mov_b32 s{T0}, {k * 32 * rowbytes}")
            a(f"buffer_load_dwordx4 v{vsrc}, s[{srd_}:{srd_+3}], s{T0} offen lds")
    def trread(nfrag, ldsbase, dst):
        for ph in range(nfrag):
            rot(ph, nfrag)
            a(f"s_lshl_b32 s{T0}, s{T0}, 13\ns_add_u32 s{T0}, s{T0}, {ldsbase}"); smod(a, T0, 163840)
            a(f"v_add_u32 v1, s{T0}, v{vTR}")
            for q in range(4):
                a(f"ds_read_b64_tr_b16 {dst(ph, q)}, v1 offset:{(8 * (q >> 1) + 2 * (q & 1)) * 128}")
            if ph % 3 == 2: a("s_waitcnt lgkmcnt(0)")
        a("s_waitcnt lgkmcnt(0)\ns_barrier")
    dma(S_WQ, vDQ, 12288, 0, 20, 0)
    dma(S_WK, vDQ, 12288, 0, 20, 81920)
    a("s_waitcnt vmcnt(20)\ns_barrier")
    trread(10, 0, lambda ph, q: ar(WA_QK + 16 * ph + 2 * q, 2))
    dma(S_WV, vDQ, 12288, 0, 20, 0)
    a("s_waitcnt vmcnt(20)\ns_barrier")
    trread(10, 81920, lambda ph, q: ar(WA_QK + 16 * ph + 8 + 2 * q, 2))
    dma(S_WO, vDO, 1280, 0, 20, 81920)
    a("s_waitcnt vmcnt(20)\ns_barrier")
    trread(10, 0, lambda ph, q: vr(WV_V + 8 * ph + 2 * q, 2))
    dma(S_WO, vDO, 1280, 20, 24, 0)
    a("s_waitcnt vmcnt(0)\ns_barrier")
    trread(12, 81920, lambda ph, q: ar(WA_O + 8 * ph + 2 * q, 2))
    WQ = lambda ph: ar(WA_QK + 16 * ph, 8)
    WK = lambda ph: ar(WA_QK + 16 * ph + 8, 8)
    WV = lambda ph: vr(WV_V + 8 * ph, 8)
    WO = lambda ph: ar(WA_O + 8 * ph, 8)
    vIDX = 3
    vMld = 4
    vOld = 7
    vLM = 8
    vLO = 18
    vZw, vVw, vPst, vVMst, vSEQ = 30, 31, 32, 33, 34
    vA = 35
    vCK = 46
    vNEG = 48
    vID = 52
    vSTP, vSTI, vSTD = 56, 57, 58
    vQ, vK, vV, vF = 60, 64, 68, 72
    vKV = 76
    vKVn = 92
    vVM = 108
    vG = 116
    vT = 118
    vFR = 128
    LM, LO, LZ, LV, LS, LSTAMP = 0, 12288, 24576, 27648, 28672, 32768
    ZP = 40
    a(f"v_mov_b32 v{vIDX}, 0x44444444\nv_mov_b32 v1, 0xeeeeeeee\nv_cndmask_b32 v{vIDX}, v{vIDX}, v1, s[{sB}:{sB+1}]")
    MFR = [(3, 1, 512), (4, 2, 128), (0, 3, 16)]
    for ph in range(10):
        rot(ph, 10); a(f"s_lshl_b32 s{T2}, s{T0}, 10\nv_lshl_add_u32 v{vLM+ph}, v{LANE}, 4, s{T2}")
        if ph < 3: vexpr(a, vMld + ph, MFR, [(sX, 16384), (T2, 1), RM_O])
    for ph in range(12):
        rot(ph, 12); a(f"s_lshl_b32 s{T0}, s{T0}, 10\ns_add_u32 s{T0}, s{T0}, {LO}\nv_lshl_add_u32 v{vLO+ph}, v{LANE}, 4, s{T0}")
    LIN = [(0, 6, 16)]
    vexpr(a, vOld, LIN, [(sGF, 12288), (S_W, 3072), RO_O])
    vexpr(a, vZw, [(0, 4, ZP), (4, 2, 8)], [(S_W, 16 * ZP), LZ])
    vexpr(a, vVw, [(0, 6, 4)], [(S_W, 256), LV])
    a(f"v_mov_b32 v1, {POL}\nbuffer_load_dword v1, v1, {WS}, 0 offen\ns_waitcnt vmcnt(0)\nv_readfirstlane_b32 s{sPOL}, v1")
    a(f"s_and_b32 s{sPOL}, s{sPOL}, 1")
    vexpr(a, vPst, [(0, 4, 16), (4, 1, 8), (5, 1, 4)], [(sJ, 16384), (sPOL, 8192), (S_W, 2048), (sGF, 256)])
    vexpr(a, vVMst, [(0, 6, 4)], [(sH, 3072), (sT, 1024), (S_W, 256), VM])
    for i in range(4): a(f"v_mov_b32 v{vNEG+i}, -1")
    for i in range(16): a(f"v_mov_b32 v{vQ+i}, 0")
    a(f"s_mov_b32 s{sC}, {hex(f2u(192 ** -0.5 * math.log2(math.e)))}")
    saddr(a, sI0, [(S_L, 4 * RI_STRIDE), RI]); saddr(a, sP0, [(S_L, 0x1000000), RPF])
    a(f"s_mov_b32 s{sS}, 0\ns_add_u32 s{sI1}, s{sI0}, {RI_STRIDE}\ns_add_u32 s{sI2}, s{sI1}, {RI_STRIDE}\ns_add_u32 s{sI3}, s{sI2}, {RI_STRIDE}")
    a(f"s_mov_b32 s{sKV}, 0\ns_mov_b32 s{sKM}, 0\ns_mov_b32 s{S_TO}, {TIMEOUT}\nv_mov_b32 v{vSEQ}, 1\ns_mov_b32 s{sSEQ}, 1")
    fo = HINT; fm = fo + 0x8000; fx = XHINT; LH = (S_L, 0x10000); LF = (S_L, 0x8000)
    def xline(xreg):
        return [(xreg, 16384), (sPOL, 8192), (sGL, 12 * 256), (sJ, 256), (S_L, 0x40000), fx]
    saddr(a, T0, xline(sX)[1:]); a(f"s_add_u32 s{sXB}, s{S_PTR}, s{T0}\ns_addc_u32 s{sXB+1}, s{S_PTR+1}, 0")
    for k in range(3): a(f"s_add_u32 s{sXO+k}, s{sX}, {k+1}\ns_and_b32 s{sXO+k}, s{sXO+k}, 3\ns_lshl_b32 s{sXO+k}, s{sXO+k}, 14")
    if stamps:
        a(f"v_cmp_gt_u32 vcc, 8, v{LANE}\nv_mov_b32 v{vSTI}, 32\ns_nop 0\nv_cndmask_b32 v{vSTI}, 0, v{vSTI}, vcc")
        saddr(a, T0, [(S_W, 2048), LSTAMP]); a(f"v_lshl_add_u32 v{vSTD}, v{LANE}, 2, s{T0}\nv_mov_b32 v{vSTP}, {LSTAMP + 8192}\nv_cndmask_b32 v{vSTP}, v{vSTP}, v{vSTD}, vcc")
        a("s_mov_b32 s92, 0\ns_mov_b32 s93, 0\ns_mov_b32 s94, 0\ns_mov_b32 s95, 0")
    FAIL = c.lab("fail"); DONE = c.lab("done")
    def smf(d, fr, w): a(f"v_smfmac_f32_16x16x64_bf16 {vr(d,4)}, {vr(vFR+4*fr,4)}, {w}, v{vIDX}")
    def timeout(L): a(f"s_sub_u32 s{S_TO}, s{S_TO}, 1\ns_cmp_lg_u32 s{S_TO}, 0\ns_cbranch_scc1 {L}\ns_branch {FAIL}")
    def br_bad(R):
        if nocheck:
            n = c.lab("nc"); a(f"s_cbranch_vccnz {n}\n{n}:")
        else: a(f"s_cbranch_vccnz {R}")
    def acc_max(i, r):
        if i == 0: a(f"v_max3_u32 v{vCK}, v{r}, v{r+1}, v{r+2}\nv_mov_b32 v{vCK+1}, v{r+3}")
        else: a(f"v_max3_u32 v{vCK}, v{vCK}, v{r}, v{r+1}\nv_max3_u32 v{vCK+1}, v{vCK+1}, v{r+2}, v{r+3}")
    cold = []
    def gather(loads, ldsaddr, early, accs, cnt):
        L = c.lab("g"); R = c.lab("r")
        a(f"{L}:")
        for i, l in enumerate(loads):
            a(l)
            if i < 2: nop(a, opt.get("lgap", 0))
        for i in range(3):
            a(f"s_waitcnt vmcnt({2-i})")
            a(f"ds_write_b128 v{ldsaddr+i}, {vr(vFR+4*i,4)}")
            if opt.get("lgap", 0):
                acc_max(i, vFR + 4 * i)
                if i < 2: early(i)
        if not opt.get("lgap", 0):
            for i in range(3):
                if i < 2: early(i)
                acc_max(i, vFR + 4 * i)
        a(f"v_max_u32 v{vCK}, v{vCK}, v{vCK+1}")
        a(f"v_cmp_eq_u32 vcc, -1, v{vCK}")
        br_bad(R)
        def rt():
            a(f"{R}:")
            if stamps: a(f"s_add_u32 s{cnt}, s{cnt}, 1")
            a("s_nop 7")
            for r in accs: a(f"v_mov_b32 v{r}, 0")
            timeout(L)
        cold.append(rt)
    def spin(vaddr, mask, vt):
        L = c.lab("sp"); D = c.lab("sd")
        a(f"s_mov_b64 exec, {mask}")
        a(f"{L}:")
        for k in range(6):
            a(f"buffer_load_dword v{vt}, v{vaddr}, {WS}, 0 offen sc1")
            a(f"v_cmp_gt_u32 vcc, v{vSEQ}, v{vt}\ns_cbranch_vccz {D}")
        a("s_waitcnt vmcnt(40)")
        timeout(L)
        a(f"{D}:\ns_mov_b64 exec, -1")
    LW = [c.lab(f"w{w}") for w in range(4)]
    for w in range(1, 4): a(f"s_cmp_eq_u32 s{S_W}, {w}\ns_cbranch_scc1 {LW[w]}")
    vS = vT + 4
    for w in range(4):
        a(f"{LW[w]}:")
        vZ = vVM
        vKVld, vSst, vSw, vZr, vFL, vHint = vA, vA + 1, vA + 2, vA + 3, vA + 4, vA + 10
        a(f"v_mov_b32 v{vHint}, 0")
        SMM = [(0, 3, 32), (4, 1, 16), (5, 1, 8), (3, 1, 4)]
        nkv = [0, 2, 2, 4][w]
        if w in (1, 2):
            vexpr(a, vKVld, LIN, [(sH, 12288), (sT, 2048), KF + (w - 1) * 6144])
            vexpr(a, vSst, [(4, 2, 256), (0, 3, 16)], [(sH, 4096), (sT, 1024), RS_O + (w - 1) * 128]); keepbit(a, vSst, 3, 0)
            vexpr(a, vSw, [(4, 2, 256), (0, 3, 16), (3, 1, 2048)], [LS + (w - 1) * 128])
        if w == 0:
            vexpr(a, vSst, [(4, 1, 16), (0, 3, 32)], [(sH, 4096), (sT, 256), RS_O + 3072]); keepbit(a, vSst, 3, 0); keepbit(a, vSst, 5, 1)
            vexpr(a, vSw, [(4, 1, 16), (0, 3, 32), (3, 1, 2048), (5, 1, 256)], [LS + 1024])
        if w == 2:
            vKMst = vA + 5; vFX2 = vA + 6; vSc2 = vA + 7; vPRG = vA + 8
            vexpr(a, vSc2, [(0, 6, 4)], [(sH, 4096), (sT, 256), RS_O + 3072])
            vexpr(a, vPRG, [(0, 6, 4)], [(sH, 128), (sT, 4), LF, FLG + 3 * 4096]); keep(a, vPRG, f"v_cmp_gt_u32 vcc, 1, v{LANE}")
            vexpr(a, vFX2, [(0, 6, 4)], xline(sX)); keep(a, vFX2, f"v_cmp_gt_u32 vcc, 1, v{LANE}")
            vexpr(a, vKMst, [(0, 3, 64), (4, 2, 16)], [(sH, 3072), (sT, 1024), KM]); keepbit(a, vKMst, 3, 1)
        if w < 3: vexpr(a, vZr, [(4, 2, 8 * ZP), (2, 2, ZP), (0, 2, 8)], [LZ])
        if w == 0:
            vPld, vMst, vFMst = vA + 5, vA + 6, vA + 7
            vexpr(a, vPld, LIN, [(sJH, 16384), (sPOL, 8192), (sGL, 4096)])
            vexpr(a, vFL, [(0, 6, 4)], [(sG, 12 * 128), (sJ, 128), LH, fo])
            a(f"s_and_b32 s{T1}, s{S_RANK}, 31\ns_lshl_b32 s{T1}, 1, s{T1}\ns_andn2_b32 s{sFM}, 0xffffff, s{T1}\ns_mov_b32 s{sFM+1}, 0")
            a(f"s_mov_b32 s{sXV}, 0\ns_mov_b32 s{sXV+1}, 0\ns_mov_b32 s{sXV+2}, 0")
            a(f"s_mul_i32 s{T1}, s{sGL}, 10\ns_add_u32 s{T1}, s{T1}, s{sJ}\ns_cmp_ge_u32 s{sJ}, 10\ns_cselect_b32 s{T1}, 31, s{T1}")
            a(f"s_and_b32 s{T2}, s{S_RANK}, 31\ns_add_u32 s{T2}, s{T2}, 1\nv_add_u32 v{vFMst}, s{T2}, v{LANE}\nv_subrev_u32 v1, 24, v{vFMst}\nv_min_u32 v{vFMst}, v{vFMst}, v1\nv_lshlrev_b32 v{vFMst}, 7, v{vFMst}")
            saddr(a, T0, [(sX, 24 * 128), (T1, 4), LH, fm]); a(f"v_add_u32 v{vFMst}, s{T0}, v{vFMst}")
            keep(a, vFMst, f"v_cmp_gt_u32 vcc, 23, v{LANE}")
            for r in range(4):
                a(f"v_bfe_u32 v1, v{LANE}, 1, 2\nv_cmp_eq_u32 vcc, {r}, v1\nv_and_b32 v1, 1, v{LANE}\nv_lshlrev_b32 v1, 4, v1\nv_mov_b32 v{vT}, 0x3f80\nv_lshlrev_b32 v1, v1, v{vT}\nv_cndmask_b32 v{vID+r}, 0, v1, vcc")
        if w in (0, 1):
            vMst = vA + 6
            vexpr(a, vMst, MFR, [(sX, 16384), (sJS, 1024), RM_O])
            a(f"v_mov_b32 v1, {OOB}\nv_cndmask_b32 v{vMst}, v{vMst}, v1, s[{sOWN}:{sOWN+1}]")
        if w == 1:
            vexpr(a, vFL, [(0, 6, 4)], [(sG, 12 * 128), (sJ, 128), LH, fm])
            a(f"s_mul_i32 s{T1}, s{sGL}, 10\ns_add_u32 s{T1}, s{T1}, s{sJ}\ns_cmp_ge_u32 s{sJ}, 10\ns_cselect_b32 s{T1}, 31, s{T1}\ns_lshl_b32 s{T1}, 1, s{T1}\ns_andn2_b32 s{sFM}, 0xfffff, s{T1}\ns_mov_b32 s{sFM+1}, 0")
            vSclr = vA + 5
            vexpr(a, vSclr, LIN, [(sH, 4096), (sT, 1024), RS_O])
            a(f"s_mov_b32 s{sXV}, 0\ns_mov_b32 s{sXV+1}, 0\ns_mov_b32 s{sXV+2}, 0\ns_mov_b32 s{sXV+3}, 0")
        if w == 3:
            vSx0, vSx1, vSm0, vSm1, vSxL, vSmL, vVr, vOst, vFX = vA + 1, vA + 2, vA + 3, vA + 5, vA + 6, vA + 7, vA + 8, vA + 9, vID
            vexpr(a, vKVld, LIN, [(sH, 12288), (sT, 4096), VT])
            for k, (vx, vm_) in enumerate(((vSx0, vSm0), (vSx1, vSm1))):
                a(f"s_add_u32 s{T2}, s{sT}, {k+1}"); smod(a, T2, 3)
                vexpr(a, vx, LIN, [(sH, 4096), (T2, 1024), RS_O])
                vexpr(a, vm_, SMM, [(sH, 4096), (T2, 256), RS_O + 3072])
            vexpr(a, vSxL, LIN, [LS]); vexpr(a, vSmL, SMM, [LS + 1280]); vexpr(a, vVr, [(0, 6, 4)], [LV])
            vexpr(a, vOst, LIN, [(sH, 3072), (sT, 1024), RO_O])
            a(f"s_and_b32 s{T1}, s{S_RANK}, 31\ns_add_u32 s{T2}, s{T1}, 1\nv_add_u32 v{vFL}, s{T2}, v{LANE}\nv_subrev_u32 v1, 24, v{vFL}\nv_min_u32 v{vFL}, v{vFL}, v1\nv_lshlrev_b32 v{vFL}, 7, v{vFL}")
            saddr(a, T0, [(sX, 24 * 128), (T1, 4), LH, fo]); a(f"v_add_u32 v{vFL}, s{T0}, v{vFL}")
            keep(a, vFL, f"v_cmp_gt_u32 vcc, 23, v{LANE}")
            for i in range(4): a(f"v_mov_b32 v{vVM+2*i+1}, 0")
            a(f"v_mov_b32 v{vG+1}, 0")
        kvl = [f"buffer_load_dwordx4 {vr(vKV+4*i,4)}, v{vKVld}, {WS}, s{sKV} offen offset:{1024*i} sc1" for i in range(nkv)]
        if opt.get("nokv"): kvl = []
        sRDY, sFB = 56, 100
        def kv_ready():
            if not (flags and nkv): return
            R = c.lab("kvw"); B = c.lab("kvb")
            a(f"s_cmp_le_u32 s{sRDY}, s{sS}\ns_cbranch_scc1 {R}\n{B}:")
            def slow():
                a(f"{R}:\ns_load_dword s{sRDY}, s[{sFB}:{sFB+1}], 0 glc\ns_waitcnt lgkmcnt(0)\ns_cmp_gt_u32 s{sRDY}, s{sS}\ns_cbranch_scc1 {B}")
                timeout(R)
            cold.append(slow)
        saddr(a, T0, [(sH, 128), LF, FLG + (4096 if w == 3 else 0)])
        a(f"s_add_u32 s{sFB}, s{S_PTR}, s{T0}\ns_addc_u32 s{sFB+1}, s{S_PTR+1}, 0\ns_mov_b32 s{sRDY}, 0")
        if w == 0:
            vexpr(a, vT, [(0, 3, 1280), (4, 2, 8)], [(sJH, 128), (sGL, 64)])
            a(f"buffer_load_dwordx2 {vr(vFR,2)}, v{vT}, s[{S_MEM}:{S_MEM+3}], 0 offen\nbuffer_load_dwordx2 {vr(vFR+2,2)}, v{vT}, s[{S_MEM}:{S_MEM+3}], 0 offen offset:32\ns_waitcnt vmcnt(0)")
            a(f"buffer_store_dwordx4 {vr(vFR,4)}, v{vMst}, {WS}, s{sI0} offen {isc}")
        kv_ready()
        if w in (1, 2):
            for l in kvl: a(l)
        LOOP = c.lab("loop")
        a(f"s_branch {LOOP}\n.p2align 6\n{LOOP}:")
        nop(a, opt.get("preM", 0))
        ml = [f"buffer_load_dwordx4 {vr(vFR+4*i,4)}, v{vMld+i}, {WS}, s{sI0} offen sc1" for i in range(3)]
        if w == 0: ml[0] = f"s_mov_b64 exec, s[{sOWN}:{sOWN+1}]\n{ml[0]}\ns_mov_b64 exec, -1"
        gather(ml, vLM, lambda i: (smf(vQ, i, WQ(i)), smf(vK, i, WK(i))), range(vQ, vQ + 8), 92)
        stamp(0)
        a("s_waitcnt lgkmcnt(0)\ns_barrier")
        RA = opt.get("ra", 3)
        rd = lambda ph: a(f"ds_read_b128 {vr(vFR+4*ph,4)}, v{vLM+ph}")
        for ph in range(3, 3 + RA): rd(ph)
        smf(vQ, 2, WQ(2)); smf(vK, 2, WK(2))
        side = list(kvl) if w == 3 else []
        if w == 2 and flags: side = [f"v_add_u32 v{vT+2}, -1, v{vSEQ}", f"buffer_store_dword v{vT+2}, v{vPRG}, {WS}, 0 offen {isc}"]
        for ph in range(3, 10):
            a(f"s_waitcnt lgkmcnt({min(RA - 1, 9 - ph)})")
            smf(vQ, ph, WQ(ph))
            if ph + RA < 10: rd(ph + RA)
            smf(vK, ph, WK(ph))
            if side: a(side.pop(0))
        smf(vV, 0, WV(0))
        nop(a, 7)
        for r in range(4): a(f"v_permlane32_swap_b32 v{vQ+r}, v{vK+r}")
        for r in range(4): a(f"v_add_f32 v{vQ+r}, v{vQ+r}, v{vK+r}")
        a(f"v_cvt_pk_bf16_f32 v{vT}, v{vQ}, v{vQ+1}\nv_cvt_pk_bf16_f32 v{vT+1}, v{vQ+2}, v{vQ+3}")
        a(f"ds_write_b64 v{vZw}, {vr(vT,2)}")
        for ph in range(1, 4): smf(vV, ph, WV(ph))
        a("s_waitcnt lgkmcnt(0)\ns_barrier")
        stamp(1)
        def vtail(pre=8):
            nop(a, pre)
            a(f"v_permlane32_swap_b32 v{vV}, v{vV+2}\nv_permlane32_swap_b32 v{vV+1}, v{vV+3}")
            a(f"v_add_f32 v{vV}, v{vV}, v{vV+2}\nv_add_f32 v{vV+1}, v{vV+1}, v{vV+3}")
            a(f"v_cvt_pk_bf16_f32 v{vT+8}, v{vV}, v{vV+1}")
            if w >= 2: a(f"v_cvt_pk_bf16_f32 v{vT+9}, v{vV+1}, v{vV}")
            a(f"ds_write_b32 v{vVw}, v{vT+(9 if w >= 2 else 8)}")
        def kmvm(w=w):
            a(f"buffer_store_dword v{vT+8}, v{vVMst}, {WS}, s{sKM} offen {isc}")
            if w == 2:
                for u in range(2): a(f"buffer_store_dwordx4 {vr(vZ+4*u,4)}, v{vKMst}, {WS}, s{sKM} offen offset:{512*u} {isc}")
        LAST = c.lab("last")
        def last(LAST=LAST, kmvm=kmvm, w=w):
            a(f"{LAST}:"); kmvm(); a("s_waitcnt vmcnt(0)\ns_barrier")
            if w == 2 and flags: a(f"buffer_store_dword v{vSEQ}, v{vPRG}, {WS}, 0 offen {isc}")
            a(f"s_branch {DONE}")
        cold.append(last)
        if w < 3:
            for u in range(2):
                for q in range(2): a(f"ds_read_b64_tr_b16 {vr(vZ+4*u+2*q,2)}, v{vZr} offset:{(u*32+q*4)*ZP}")
            for ph in range(4, 6): smf(vV, ph, WV(ph))
            A0, A1 = (vKV, vKV + 4) if w > 0 else (vZ, vZ + 4)
            a("s_waitcnt lgkmcnt(2)")
            a(f"v_mfma_f32_16x16x32_bf16 {vr(vS,4)}, {vr(A0,4)}, {vr(vZ,4)}, 0")
            a("s_waitcnt lgkmcnt(0)")
            a(f"v_mfma_f32_16x16x32_bf16 {vr(vS,4)}, {vr(A1,4)}, {vr(vZ+4,4)}, {vr(vS,4)}")
            nop(a, 8)
            a(f"buffer_store_dwordx4 {vr(vS,4)}, v{vSst}, {WS}, s{sI0} offen {isc}")
            stamp(2)
            a(f"ds_write_b128 v{vSw}, {vr(vS,4)}")
            for ph in range(6, 10): smf(vV, ph, WV(ph))
            a("s_waitcnt lgkmcnt(0)\ns_barrier")
            for i in range(8): a(f"v_mov_b32 v{vQ+i}, 0")
            vtail(0)
            a(f"s_cmp_eq_u32 s{sS}, {NSEG-1}\ns_cbranch_scc1 {LAST}")
            a("s_waitcnt lgkmcnt(0)\ns_barrier")
            for i in range(4): a(f"v_mov_b32 v{vV+i}, 0")
            if w == 0 and oflag is not None:
                nop(a, opt.get("ospin0", 0)); spin(vFL, f"s[{sFM}:{sFM+1}]", vHint)
            if w == 2 and xflag is not None:
                nop(a, xflag); a(f"buffer_store_dword v{vSEQ}, v{vFX2}, {WS}, 0 offen sc1")
            if w == 1 and xflag is not None:
                L = c.lab("xs"); D = c.lab("xd")
                nop(a, opt.get("xspin0", 0))
                a(f"{L}:")
                for k in range(3):
                    a(f"s_load_dword s{sXV+k}, s[{sXB}:{sXB+1}], s{sXO+k} glc")
                    a(f"s_min_u32 s{T0}, s{sXV}, s{sXV+1}\ns_min_u32 s{T0}, s{T0}, s{sXV+2}\ns_cmp_ge_u32 s{T0}, s{sSEQ}\ns_cbranch_scc1 {D}")
                a("s_waitcnt lgkmcnt(12)")
                timeout(L); a(f"{D}:")
        else:
            for ph in range(4, 10): smf(vV, ph, WV(ph))
            X = vFR; MMr = vFR + 12
            def sload():
                a(f"buffer_load_dwordx4 {vr(X,4)}, v{vSx0}, {WS}, s{sI0} offen sc1\nbuffer_load_dwordx4 {vr(X+4,4)}, v{vSx1}, {WS}, s{sI0} offen sc1")
                a(f"buffer_load_dword v{MMr}, v{vSm0}, {WS}, s{sI0} offen sc1\nbuffer_load_dword v{MMr+1}, v{vSm1}, {WS}, s{sI0} offen sc1")
            def hint_at(k):
                if oflag == k: a(f"buffer_store_dword v{vSEQ}, v{vFL}, {WS}, 0 offen {isc}")
                return int(oflag == k)
            vtail()
            a(f"s_cmp_eq_u32 s{sS}, {NSEG-1}\ns_barrier\ns_cbranch_scc1 {LAST}")
            nop(a, opt.get("preS", 0))
            depth = opt.get("sdepth", 2)
            L = c.lab("poll"); R = c.lab("sr")
            sload()
            a(f"ds_read_b128 {vr(X+8,4)}, v{vSxL}\nds_read_b32 v{MMr+2}, v{vSmL}")
            for i in range(depth - 1): nop(a, opt.get("sgap", 8)); sload()
            a("s_waitcnt lgkmcnt(0)\ns_barrier")
            for i in range(4): a(f"ds_read_b32 v{vVM+2*i}, v{vVr} offset:{256*i}")
            a(f"s_waitcnt vmcnt({4*depth})")
            for t_ in (2, 3): a(f"v_swap_b32 v{vKV+4*t_}, v{vKV+4*t_+2}\nv_swap_b32 v{vKV+4*t_+1}, v{vKV+4*t_+3}")
            a(f"{L}:\ns_waitcnt vmcnt({4*(depth-1)})")
            s0 = vFR + 16; p0 = vFR + 24; Fq = vFR + 32; m = vT; t = vT + 1; m2 = vT + 2; t2 = vT + 3
            a(f"v_max3_u32 v{vCK}, v{X}, v{X+1}, v{X+2}\nv_max3_u32 v{vCK+1}, v{X+3}, v{X+4}, v{X+5}")
            a(f"v_max3_u32 v{vCK}, v{vCK}, v{X+6}, v{X+7}\nv_max3_u32 v{vCK+1}, v{vCK+1}, v{MMr}, v{MMr+1}")
            a(f"v_pk_add_f32 {vr(s0,2)}, {vr(X+8,2)}, {vr(X,2)}\nv_max_u32 v{vCK}, v{vCK}, v{vCK+1}")
            a(f"v_pk_add_f32 {vr(s0+2,2)}, {vr(X+10,2)}, {vr(X+2,2)}\nv_cmp_eq_u32 vcc, -1, v{vCK}\nv_add_f32 v{s0+4}, v{MMr+2}, v{MMr}")
            a(f"v_pk_add_f32 {vr(s0,2)}, {vr(s0,2)}, {vr(X+4,2)}\nv_pk_add_f32 {vr(s0+2,2)}, {vr(s0+2,2)}, {vr(X+6,2)}\nv_add_f32 v{s0+4}, v{s0+4}, v{MMr+1}")
            br_bad(R)
            def srt(L=L, R=R, sload=sload):
                a(f"{R}:"); sload()
                if stamps: a("s_add_u32 s93, s93, 1")
                timeout(L)
            cold.append(srt)
            stamp(2)
            ROR = "row_ror:8 row_mask:0xf bank_mask:0xf"
            a(f"v_max3_f32 v{m}, v{s0}, v{s0+1}, v{s0+4}\nv_max3_f32 v{m}, v{m}, v{s0+2}, v{s0+3}")
            nop(a, 2 - hint_at(0))
            a(f"v_max_f32_dpp v{m2}, v{m}, v{m} {ROR}\nv_max_f32_dpp v{t2}, v{m}, v{m} {ROR}\ns_nop 1")
            a(f"v_permlane16_swap_b32 v{t2}, v{m2}\nv_max_f32 v{m}, v{m2}, v{t2}\nv_max_f32 v{t}, v{m2}, v{t2}")
            nop(a, 2 - hint_at(1))
            a(f"v_permlane32_swap_b32 v{t}, v{m}\nv_max_f32 v{m}, v{m}, v{t}")
            a(f"v_mul_f32 v{m}, s{sC}, v{m}")
            for r in (0, 1, 2, 3, 4): a(f"v_fma_f32 v{p0+r}, v{s0+r}, s{sC}, -v{m}")
            for r in (0, 1, 2): a(f"v_exp_f32 v{p0+r}, v{p0+r}")
            a(f"v_cvt_pk_bf16_f32 v{Fq}, v{p0}, v{p0+1}")
            a(f"v_exp_f32 v{p0+3}, v{p0+3}\nv_exp_f32 v{p0+4}, v{p0+4}")
            a(f"v_cvt_pk_bf16_f32 v{Fq+1}, v{p0+2}, v{p0+3}")
            a(f"v_mov_b32_dpp v{Fq+2}, v{Fq} {ROR}\nv_mov_b32_dpp v{t2}, v{p0+4} {ROR}\nv_mov_b32_dpp v{Fq+3}, v{Fq+1} {ROR}")
            a(f"v_add_f32 v{m}, v{p0}, v{p0+1}\nv_cvt_pk_bf16_f32 v{vG}, v{p0+4}, v{t2}")
            Tt = [vFR + 36, vFR + 40, vFR + 44, vQ]
            def pvx(i): a(f"v_mfma_f32_16x16x32_bf16 {vr(Tt[i],4)}, {vr(vKV+4*i,4)}, {vr(Fq,4)}, 0")
            def pvm(i): a(f"v_mfma_f32_16x16x16_bf16 {vr(Tt[i],4)}, {vr(vVM+2*i,2)}, {vr(vG,2)}, {vr(Tt[i],4)}")
            pvx(0)
            a(f"v_add_f32 v{t}, v{p0+2}, v{p0+3}\nv_add_f32 v{m}, v{m}, v{p0+4}")
            pvx(2)
            a(f"v_add_f32 v{m}, v{m}, v{t}")
            hint_at(2); a("s_waitcnt lgkmcnt(0)")
            pvm(0)
            a(f"v_add_f32_dpp v{m2}, v{m}, v{m} {ROR}\nv_add_f32_dpp v{t2}, v{m}, v{m} {ROR}")
            pvm(2)
            if not hint_at(3): a("s_nop 0")
            a(f"v_permlane16_swap_b32 v{t2}, v{m2}")
            pvx(1)
            a(f"v_add_f32 v{m}, v{m2}, v{t2}\nv_add_f32 v{t}, v{m2}, v{t2}")
            pvx(3)
            a(f"s_nop 0\nv_permlane32_swap_b32 v{t}, v{m}")
            pvm(1)
            a(f"v_add_f32 v{m}, v{m}, v{t}\nv_rcp_f32 v{m}, v{m}")
            pvm(3)
            U = vFR + 16
            for r in range(4): a(f"v_cndmask_b32 v{U+r}, v{Tt[0]+r}, v{Tt[2]+r}, s[{sB}:{sB+1}]")
            for r in range(4): a(f"v_mul_f32 v{U+r}, v{U+r}, v{m}")
            for r in range(4): a(f"v_cndmask_b32 v{U+4+r}, v{Tt[1]+r}, v{Tt[3]+r}, s[{sB}:{sB+1}]")
            for r in range(4): a(f"v_mul_f32 v{U+4+r}, v{U+4+r}, v{m}")
            for r in range(4): a(f"v_cvt_pk_bf16_f32 v{U+8+r}, v{U+2*r}, v{U+2*r+1}")
            a(f"buffer_store_dwordx4 {vr(U+8,4)}, v{vOst}, {WS}, s{sI0} offen {isc}")
        a("s_barrier")
        stamp(3)
        nop(a, opt.get("preO", 0))
        gather([f"buffer_load_dwordx4 {vr(vFR+4*i,4)}, v{vOld}, {WS}, s{sI0} offen offset:{1024*i} sc1" for i in range(3)], vLO,
               lambda i: smf(vF, i, WO(i)), range(vF, vF + 4), 94)
        stamp(4)
        a("s_waitcnt lgkmcnt(0)\ns_barrier")
        RF = opt.get("rf", 4)
        rd = lambda ph: a(f"ds_read_b128 {vr(vFR+4*ph,4)}, v{vLO+ph}")
        for ph in range(3, 3 + RF): rd(ph)
        pflag = opt.get("pflag")
        if w == 2 and pflag == 2: a(f"buffer_store_dword v{vSEQ}, v{vFX2}, {WS}, 0 offen sc1")
        smf(vF, 2, WO(2))
        for ph in range(3, 12):
            a(f"s_waitcnt lgkmcnt({min(RF - 1, 11 - ph)})")
            smf(vF, ph, WO(ph))
            if ph + RF < 12: rd(ph + RF)
            if w == 2 and pflag == ph: a(f"buffer_store_dword v{vSEQ}, v{vFX2}, {WS}, 0 offen sc1")
        def xload():
            for k in range(3): a(f"s_load_dword s{sXV+k}, s[{sXB}:{sXB+1}], s{sXO+k} glc")
        if w == 0 and pflag is not None: xload()
        a(f"s_mov_b32 s{sPc}, s{sP0}\ns_add_u32 s{sS}, s{sS}, 1\ns_add_u32 s{sP0}, s{sP0}, {RP_STRIDE}\ns_and_b32 s{T0}, s{sS}, 7\ns_cmp_eq_u32 s{T0}, 0\ns_cselect_b32 s{sFLIP}, 0x2000, 0")
        a(f"s_add_u32 s{sKV}, s{sKV}, {32*12288}\ns_mov_b32 s{S_TO}, {TIMEOUT}")
        a(f"v_permlane32_swap_b32 v{vF}, v{vF+2}\nv_permlane32_swap_b32 v{vF+1}, v{vF+3}")
        a(f"v_add_f32 v{vF}, v{vF}, v{vF+2}\nv_add_f32 v{vF+1}, v{vF+1}, v{vF+3}")
        a(f"v_cvt_pk_bf16_f32 v{vT}, v{vF}, v{vF+1}")
        a(f"buffer_store_dword v{vT}, v{vPst}, {WS}, s{sPc} offen sc1")
        stamp(5)
        for i in range(4): a(f"v_mov_b32 v{vF+i}, 0")
        a(f"v_xor_b32 v{vPst}, s{sFLIP}, v{vPst}")
        kv_ready()
        if w in (1, 2):
            for l in kvl: a(l)
        if w == 3:
            for i in range(12): a(f"v_mov_b32 v{vQ+i}, 0")
        def dump():
            nop(a, 16)
            for i in range(8): a(f"v_writelane_b32 v{vSTD}, s{ST+2*i}, {i}")
            a(f"ds_write_b32 v{vSTP}, v{vSTD}\nv_add_u32 v{vSTP}, v{vSTP}, v{vSTI}")
        if stamps and w != 0: dump()
        if w != 0: nop(a, opt.get("preSide", 0))
        kmvm()
        if w == 1:
            a(f"buffer_store_dwordx4 {vr(vNEG,4)}, v{vSclr}, {WS}, s{sI2} offen {isc}")
            a(f"buffer_store_dwordx4 {vr(vNEG,4)}, v{vMst}, {WS}, s{sI3} offen {isc}")
        if w == 2: a(f"buffer_store_dword v{vNEG}, v{vSc2}, {WS}, s{sI2} offen {isc}")
        if w == 3: a(f"buffer_store_dwordx4 {vr(vNEG,4)}, v{vOst}, {WS}, s{sI2} offen {isc}")
        a(f"s_mov_b32 s{T0}, s{sI0}\ns_mov_b32 s{sI0}, s{sI1}\ns_mov_b32 s{sI1}, s{sI2}\ns_mov_b32 s{sI2}, s{sI3}\ns_mov_b32 s{sI3}, s{T0}")
        a(f"s_add_u32 s{sKM}, s{sKM}, {32*3072}")
        if w == 0:
            if pflag is not None:
                L = c.lab("xs"); D = c.lab("xd")
                a(f"{L}:")
                xload()
                for k in range(opt.get("xrep", 3)):
                    a(f"s_min_u32 s{T0}, s{sXV}, s{sXV+1}\ns_min_u32 s{T0}, s{T0}, s{sXV+2}\ns_cmp_ge_u32 s{T0}, s{sSEQ}\ns_cbranch_scc1 {D}")
                a("s_waitcnt lgkmcnt(12)")
                timeout(L); a(f"{D}:")
                if opt.get("st7x"): stamp(7)
            if opt.get("prePack", 0): a("s_waitcnt vmcnt(0)")
            nop(a, opt.get("preP", 0))
            L = c.lab("p"); R = c.lab("pr")
            def pload():
                for i in range(4): a(f"buffer_load_dwordx4 {vr(vFR+16+4*i,4)}, v{vPld}, {WS}, s{sPc} offen offset:{1024*i} sc1")
            pload()
            if stamps: dump()
            a(f"{L}:")
            fl = 0
            hint = f"buffer_store_dword v{vSEQ}, v{vFMst}, {WS}, 0 offen {isc}"
            if mflag == "ack": a("s_waitcnt vmcnt(4)"); a(hint); fl = 1
            elif mflag is not None and mflag >= 10: nop(a, mflag); a(hint); fl = 1
            for i in range(4):
                a(f"s_waitcnt vmcnt({3-i+fl})")
                if mflag == i: a(hint); fl = 1
                d = vFR + 32 + 4 * (i >> 1)
                a(f"v_mfma_f32_16x16x32_bf16 {vr(d,4)}, {vr(vFR+16+4*i,4)}, {vr(vID,4)}, {'0' if i % 2 == 0 else vr(d,4)}")
                acc_max(i, vFR + 16 + 4 * i)
            a(f"v_max_u32 v{vCK}, v{vCK}, v{vCK+1}\nv_cmp_eq_u32 vcc, -1, v{vCK}")
            for r in range(2): a(f"v_cvt_pk_bf16_f32 v{vFR+r}, v{vFR+32+2*r}, v{vFR+33+2*r}")
            a("s_nop 0")
            br_bad(R)
            if mflag == 4: a(hint)
            for r in range(2, 4): a(f"v_cvt_pk_bf16_f32 v{vFR+r}, v{vFR+32+2*r}, v{vFR+33+2*r}")
            a(f"buffer_store_dwordx4 {vr(vFR,4)}, v{vMst}, {WS}, s{sI0} offen {isc}")
            stamp(6)
            def prt(L=L, R=R, pload=pload):
                a(f"{R}:"); pload()
                if stamps: a("s_add_u32 s95, s95, 1")
                timeout(L)
            cold.append(prt)
        if w == 1 and mflag is not None:
            nop(a, opt.get("mspin0", 0))
            spin(vFL, f"s[{sFM}:{sFM+1}]", vHint)
        a("s_barrier")
        if not (opt.get("st7x") and w == 0): stamp(7)
        a(f"v_add_u32 v{vSEQ}, 1, v{vSEQ}\ns_add_u32 s{sSEQ}, s{sSEQ}, 1")
        if w == 0: a(f"v_xor_b32 v{vPld}, s{sFLIP}, v{vPld}")
        a(f"s_branch {LOOP}")
        for f in cold: f()
        cold.clear()
    a(f"{FAIL}:")
    a(f"s_mov_b64 exec, 1\nv_mov_b32 v1, {ERR}\nv_mov_b32 v{vT}, 1\nbuffer_atomic_add v{vT}, v1, {WS}, 0 offen\ns_mov_b64 exec, -1")
    a(f"{DONE}:")
    if stamps:
        vexpr(a, vT, LIN, [(S_W, 2048), LSTAMP])
        a(f"ds_read_b128 {vr(vFR,4)}, v{vT}\nds_read_b128 {vr(vFR+4,4)}, v{vT} offset:1024")
        vexpr(a, vT, LIN, [(S_RANK, 4 * 4096), (S_W, 4096), (S_L, 0x400000), STAMP])
        a(f"s_waitcnt lgkmcnt(0)\nbuffer_store_dwordx4 {vr(vFR,4)}, v{vT}, {WS}, 0 offen\nbuffer_store_dwordx4 {vr(vFR+4,4)}, v{vT}, {WS}, 0 offen offset:1024")
        a(f"s_mov_b64 exec, 1")
        for i in range(4): a(f"v_mov_b32 v{vFR+8+i}, s{92+i}")
        a(f"buffer_store_dwordx4 {vr(vFR+8,4)}, v{vT}, {WS}, 0 offen offset:4080")
    a("s_waitcnt vmcnt(0) lgkmcnt(0)")
    a("s_endpgm")
```

```python
WS_SIZE = 268435456
CNT   = 0x0
POL   = 0x1000
ERR   = 0x1100
FLG   = 0x2000
HINT  = 0x20000
RP    = 0x200000
RP_STRIDE = 0x40000
RI    = 0x400000
RI_STRIDE = 0x50000
RM_O, RS_O, RO_O = 0, 0x10000, 0x30000
RING_END = RI + 8 * RI_STRIDE
HF    = 0x700000
X1    = 0xA00000
X2    = 0xD00000
H2    = 0x1000000
UU    = 0x1300000
OP    = 0x1600000
OP_STRIDE = 0x280000
KM    = 0x2000000
VM    = 0x2800000
KF    = 0x3000000
QF    = 0x5000000
VT    = 0x7000000
OF    = QF
STAMP = 0xC000000
RPF   = 0xD000000
XHINT = 0xD000000 + 0x30000
OOB   = 0x7ffffff0
W_BYTES = 640 * 6144 * 2
```

```python
from asmlib import *
from layout import *
from chain import saddr, vexpr, keep, nop, f2u, T0, T1, T2, T3, LANE, S_W, S_WS, WS, S_PTR
import math
XB = 2048 * 640 * 2
S_X = 12; S_A = 16; S_Bv = 20; S_O = 24

def common(a, name, nwg):
    a(f"s_cmp_ge_u32 s2, {nwg}\ns_cbranch_scc1 {name}_end")
    a("s_load_dwordx2 s[4:5], s[0:1], 112")
    a(f"v_and_b32 v2, 63, v0\nv_lshrrev_b32 v1, 6, v0\ns_nop 0\nv_readfirstlane_b32 s{S_W}, v1")
def ws_sub(a, d, off, n):
    a(f"s_add_u32 s{d}, s4, {off}\ns_addc_u32 s{d+1}, s5, 0\ns_and_b32 s{d+1}, s{d+1}, 0xffff\ns_mov_b32 s{d+2}, {n}\ns_mov_b32 s{d+3}, 0x00020000")

def rowsum(a, v):
    for k in (1, 2, 4, 8): a(f"s_nop 1\nv_add_f32_dpp v{v}, v{v}, v{v} row_ror:{k} row_mask:0xf bank_mask:0xf")

def ln_body(a, variant):
    vAd, vRaw, vX, vT = 3, 8, 128, 4
    a(f"s_lshl_b32 s34, s2, 3\ns_lshl_b32 s{T0}, s{S_W}, 2\ns_add_u32 s34, s34, s{T0}")
    vexpr(a, vAd, [(4, 2, 1280), (0, 4, 16)], [(34, 1280)])
    for i in range(5): a(f"buffer_load_dwordx4 {vr(vRaw+4*i,4)}, v{vAd}, s[{S_X}:{S_X+3}], 0 offen offset:{256*i}")
    if variant == "B":
        for p in range(4):
            a(f"s_mov_b32 s{T1}, {OP + p * OP_STRIDE}")
            for i in range(5): a(f"buffer_load_dwordx4 {vr(vRaw+20*(p+1)+4*i,4)}, v{vAd}, {WS}, s{T1} offen offset:{256*i}")
    a("s_mov_b32 s35, 0xffff0000")
    def unpack(src, dst, add):
        for j in range(20):
            if not add: a(f"v_lshlrev_b32 v{dst+2*j}, 16, v{src+j}\nv_and_b32 v{dst+2*j+1}, s35, v{src+j}")
            else: a(f"v_lshlrev_b32 v{vT}, 16, v{src+j}\nv_and_b32 v{vT+1}, s35, v{src+j}\nv_pk_add_f32 {vr(dst+2*j,2)}, {vr(dst+2*j,2)}, {vr(vT,2)}")
    if variant == "B":
        a("s_waitcnt vmcnt(15)"); unpack(vRaw + 20, vX, False)
        for p in range(1, 4): a(f"s_waitcnt vmcnt({15-5*p})"); unpack(vRaw + 20 * (p + 1), vX, True)
        unpack(vRaw, vX, True)
        for j in range(20): a(f"v_cvt_pk_bf16_f32 v{vRaw+j}, v{vX+2*j}, v{vX+2*j+1}")
        a(f"s_mov_b32 s{T1}, {X1}")
        for i in range(5): a(f"buffer_store_dwordx4 {vr(vRaw+4*i,4)}, v{vAd}, {WS}, s{T1} offen offset:{256*i}")
    else: a("s_waitcnt vmcnt(0)")
    unpack(vRaw, vX, False)
    a(f"v_pk_add_f32 {vr(vT,2)}, {vr(vX,2)}, {vr(vX+2,2)}")
    for j in range(2, 20): a(f"v_pk_add_f32 {vr(vT,2)}, {vr(vT,2)}, {vr(vX+2*j,2)}")
    a(f"v_add_f32 v{vT}, v{vT}, v{vT+1}"); rowsum(a, vT)
    a(f"v_mul_f32 v{vT}, {hex(f2u(1/640))}, v{vT}")
    for j in range(40): a(f"v_sub_f32 v{vX+j}, v{vX+j}, v{vT}")
    a(f"v_pk_mul_f32 {vr(vT,2)}, {vr(vX,2)}, {vr(vX,2)}")
    for j in range(1, 20): a(f"v_pk_fma_f32 {vr(vT,2)}, {vr(vX+2*j,2)}, {vr(vX+2*j,2)}, {vr(vT,2)}")
    a(f"v_add_f32 v{vT}, v{vT}, v{vT+1}"); rowsum(a, vT)
    a(f"v_mul_f32 v{vT}, {hex(f2u(1/640))}, v{vT}\nv_add_f32 v{vT+1}, {hex(f2u(1e-5))}, v{vT}\nv_rsq_f32 v{vT+1}, v{vT+1}\ns_nop 0")
    if variant == "B":
        a(f"v_mul_f32 v{vT}, v{vT}, v{vT+1}\nv_mul_f32 v{vT}, v{vT}, v{vT+1}\nv_add_f32 v{vT}, {hex(f2u(1e-5))}, v{vT}\nv_rsq_f32 v{vT}, v{vT}\ns_nop 0\nv_mul_f32 v{vT+1}, v{vT+1}, v{vT}")
    for j in range(40): a(f"v_mul_f32 v{vX+j}, v{vX+j}, v{vT+1}")
    vO = vRaw + 20
    for j in range(20): a(f"v_cvt_pk_bf16_f32 v{vO+j}, v{vX+2*j}, v{vX+2*j+1}")
    if variant == "B":
        a(f"s_mov_b32 s{T1}, {H2}")
        for i in range(5): a(f"buffer_store_dwordx4 {vr(vO+4*i,4)}, v{vAd}, {WS}, s{T1} offen offset:{256*i}")
    else:
        a(f"s_lshr_b32 s36, s2, 2\ns_and_b32 s37, s2, 3")
        vexpr(a, vAd, [(2, 2, 1024), (0, 2, 256), (4, 2, 16)], [(36, 40960), (S_W, 20480), (37, 64), HF])
        for i in range(5): a(f"s_mov_b32 s{T1}, {4096*i}\nbuffer_store_dwordx4 {vr(vO+4*i,4)}, v{vAd}, {WS}, s{T1} offen")

def prep_kernel(a, name):
    kernel_begin(a, name); common(a, name, 257)
    a("s_load_dwordx2 s[6:7], s[0:1], 0\ns_waitcnt lgkmcnt(0)")
    srd(a, S_WS, 4, WS_SIZE); srd(a, S_X, 6, XB)
    a(f"s_cmp_eq_u32 s2, 256\ns_cbranch_scc1 {name}_probe")
    a(f"s_lshl_b32 s{T0}, s2, 7\nv_add_u32 v200, s{T0}, v0\nv_lshlrev_b32 v200, 4, v200")
    for i in range(4): a(f"v_mov_b32 v{204+i}, -1\nv_mov_b32 v{208+i}, 0")
    for i in range(5): a(f"s_mov_b32 s{T1}, {RI + i * 0x80000}\nbuffer_store_dwordx4 v[204:207], v200, {WS}, s{T1} offen")
    assert RING_END - RI == 5 * 0x80000
    a(f"v_and_b32 v201, 0x3ffff, v200\nv_lshrrev_b32 v202, 18, v200\nv_lshl_add_u32 v203, v202, 24, v201\nv_cmp_gt_u32 vcc, 0x30000, v201")
    a(f"v_mov_b32 v202, {OOB}\ns_mov_b32 s{T1}, {RPF}\nv_cndmask_b32 v203, v202, v203, vcc\nv_cndmask_b32 v201, v200, v202, vcc")
    a(f"buffer_store_dwordx4 v[204:207], v203, {WS}, s{T1} offen\nbuffer_store_dwordx4 v[208:211], v201, {WS}, s{T1} offen")
    a(f"v_cmp_gt_u32 vcc, 0x40000, v200\ns_nop 1\nv_cndmask_b32 v201, v202, v200, vcc\nv_cmp_ne_u32 vcc, {POL}, v200\ns_nop 1\nv_cndmask_b32 v201, v202, v201, vcc")
    a(f"buffer_store_dwordx4 v[208:211], v201, {WS}, 0 offen")
    ln_body(a, "A")
    a("s_endpgm")
    a(f"{name}_probe:")
    a(f"s_lshl_b32 s{T0}, s{S_W}, 13\ns_add_u32 s{T0}, s{T0}, {RPF + 0xB0000}\ns_add_u32 s36, s4, s{T0}\ns_addc_u32 s37, s5, 0\ns_mov_b32 s38, -1")
    for k in range(5):
        a("s_memtime s[40:41]\ns_waitcnt lgkmcnt(0)\ns_load_dword s39, s[36:37], 0 glc\ns_waitcnt lgkmcnt(0)\ns_memtime s[42:43]\ns_waitcnt lgkmcnt(0)\ns_sub_u32 s39, s42, s40\ns_min_u32 s38, s38, s39")
    a(f"s_lshl_b32 s{T0}, s{S_W}, 2\nv_mov_b32 v3, s{T0}\nv_mov_b32 v4, s38\nds_write_b32 v3, v4\ns_waitcnt lgkmcnt(0)\ns_barrier\nv_mov_b32 v3, 0\nds_read_b64 v[4:5], v3")
    a("s_getreg_b32 s34, hwreg(HW_REG_XCC_ID)\ns_lshr_b32 s34, s34, 2\ns_and_b32 s34, s34, 1\ns_waitcnt lgkmcnt(0)")
    a(f"v_cmp_gt_u32 vcc, v4, v5\nv_mov_b32 v3, {POL}\ns_nop 0\nv_cndmask_b32 v4, 0, 1, vcc\nv_xor_b32 v4, s34, v4\ns_mov_b64 exec, 1\nbuffer_store_dword v4, v3, {WS}, 0 offen")
    a(f"{name}_end:\ns_endpgm")
    kernel_desc(a, name, 212, 80)

def lna_kernel(a, name):
    kernel_begin(a, name); common(a, name, 256)
    a("s_waitcnt lgkmcnt(0)"); srd(a, S_WS, 4, WS_SIZE); ws_sub(a, S_X, X2, XB)
    ln_body(a, "A")
    a(f"{name}_end:\ns_endpgm"); kernel_desc(a, name, 168, 80)

def lnb_kernels(a, names):
    kernel_begin(a, names[1]); common(a, "lnb", 256)
    a("s_waitcnt lgkmcnt(0)"); ws_sub(a, S_X, X2, XB); a("s_branch lnb_body")
    kernel_begin(a, names[0]); common(a, "lnb", 256)
    a("s_load_dwordx2 s[6:7], s[0:1], 0\ns_waitcnt lgkmcnt(0)"); srd(a, S_X, 6, XB)
    a("lnb_body:"); srd(a, S_WS, 4, WS_SIZE)
    ln_body(a, "B")
    a("lnb_end:\ns_endpgm")
    for n in names: kernel_desc(a, n, 168, 80)

def tr_setup(a, vD, vR, rowbytes, terms, extra=0):
    for par in range(2):
        a(f"v_bfe_u32 v1, v{LANE}, 4, 1\nv_or_b32 v1, {2*par}, v1\nv_lshlrev_b32 v1, 1, v1\nv_and_b32 v3, 7, v{LANE}\nv_xor_b32 v3, v3, v1\nv_lshlrev_b32 v3, 4, v3")
        vexpr(a, vD + par, [(3, 3, rowbytes)], terms + [8 * par * rowbytes])
        a(f"v_add_u32 v{vD+par}, v{vD+par}, v3")
    if vR is None: return
    for i in range(4):
        a(f"v_bfe_u32 v1, v{LANE}, 3, 2\nv_xor_b32 v3, {i}, v1\nv_lshlrev_b32 v3, 5, v3")
        vexpr(a, vR + i, [(4, 2, 1024), (2, 2, 128), (0, 2, 8)], [(S_W, 40960)])
        a(f"v_add_u32 v{vR+i}, v{vR+i}, v3")
def tr_dma(a, srd_, vD, rowbytes, ks, lds, base=0):
    for k in range(4):
        a(f"s_add_u32 m0, s38, {lds + k*1024}\ns_mov_b32 s{T0}, {base + (32*ks + 16*(k>>1)) * rowbytes}")
        a(f"buffer_load_dwordx4 v{vD + (k&1)}, s[{srd_}:{srd_+3}], s{T0} offen lds")

def b1_kernel(a, name):
    kernel_begin(a, name); common(a, name, 240)
    a("s_load_dwordx4 s[40:43], s[0:1], 64\ns_waitcnt lgkmcnt(0)")
    srd(a, S_WS, 4, WS_SIZE); srd(a, S_A, 40, 2048 * 1536 * 2); srd(a, S_Bv, 42, 1536 * 2)
    sF, sD = 34, 35
    a(f"s_lshr_b32 s36, s2, 3\ns_mul_i32 s{sD}, s36, 86\ns_lshr_b32 s{sD}, s{sD}, 8\ns_mul_i32 s37, s{sD}, 3\ns_sub_u32 s36, s36, s37\ns_and_b32 s{sF}, s2, 7\ns_mul_i32 s{sF}, s{sF}, 3\ns_add_u32 s{sF}, s{sF}, s36")
    a(f"s_mul_i32 s38, s{S_W}, 40960")
    vDH, vDW, vR, vB, vFR, vAcc = 4, 6, 8, 12, 32, 96
    tr_setup(a, vDH, vR, 1280, [(S_W, 512 * 1280), (sD, 128)])
    tr_setup(a, vDW, None, 3072, [(S_W, 512 * 3072), (sF, 128)])
    NS = 5
    def issue(ks):
        tr_dma(a, S_A, vDW, 3072, ks, (ks % NS) * 8192)
        tr_dma(a, S_WS, vDH, 1280, ks, (ks % NS) * 8192 + 4096, H2)
    vexpr(a, 1, [(4, 2, 16)], [(sF, 128)], tmp=3)
    for k in range(2): a(f"buffer_load_dwordx4 {vr(vB+4*k,4)}, v1, s[{S_Bv}:{S_Bv+3}], 0 offen offset:{64*k}")
    for ks in range(NS): issue(ks)
    def rd(ks):
        for op in range(2):
            for i in range(4):
                for q in range(2): a(f"ds_read_b64_tr_b16 {vr(vFR+32*(ks&1)+16*op+4*i+2*q,2)}, v{vR+i} offset:{(ks % NS)*8192 + op*4096 + q*512}")
            if op == 0: a("s_waitcnt lgkmcnt(7)")
    def mm(ks):
        for i in range(4):
            for j in range(4):
                d = vr(vAcc + 16 * j + 4 * i, 4)
                a(f"v_mfma_f32_16x16x32_bf16 {d}, {vr(vFR+32*(ks&1)+4*i,4)}, {vr(vFR+32*(ks&1)+16+4*j,4)}, {'0' if ks == 0 else d}")
    for ks in range(17):
        if ks < 16:
            a(f"s_waitcnt vmcnt({8 * min(NS - 1, 15 - ks)})"); rd(ks)
        if ks > 0: mm(ks - 1)
        a("s_waitcnt lgkmcnt(0)")
        if ks + NS < 16: issue(ks + NS)
    P = 272
    vW, vRd, vSt, vX = 4, 5, 6, 24
    vexpr(a, vW, [(0, 4, P), (4, 2, 16)], [(S_W, 64 * P)])
    vexpr(a, vRd, [(0, 4, P), (4, 2, 32)], [(S_W, 16 * P)])
    vexpr(a, vSt, [(0, 6, 16)], [(sD, 4 * 49152), (S_W, 49152), (sF, 2048), UU])
    a("s_barrier")
    for j in range(4):
        for i in range(4): a(f"ds_write_b128 v{vW}, {vr(vAcc+16*j+4*i,4)} offset:{16*j*P + 64*i}")
        if j % 2: a("s_waitcnt lgkmcnt(0)")
    a("s_barrier")
    a(f"s_mov_b32 s35, 0xffff0000\ns_mov_b32 s36, {hex(f2u(-2 * math.sqrt(2 / math.pi) * math.log2(math.e)))}\ns_mov_b32 s37, {hex(f2u(-2 * math.sqrt(2 / math.pi) * math.log2(math.e) * 0.044715))}")
    for k in range(2):
        for p in range(4):
            for h in range(2): a(f"ds_read_b128 {vr(vX+32*k+8*p+4*h,4)}, v{vRd} offset:{p*64*P + 128*k + 16*h}")
        a("s_waitcnt lgkmcnt(0)")
    for k in range(2):
        b = vX + 32 * k
        for i in range(0, 8, 2): a(f"v_pk_add_f32 {vr(b+i,2)}, {vr(b+i,2)}, {vr(b+8+i,2)}\nv_pk_add_f32 {vr(b+16+i,2)}, {vr(b+16+i,2)}, {vr(b+24+i,2)}")
        for i in range(4): a(f"v_lshlrev_b32 v{b+8+2*i}, 16, v{vB+4*k+i}\nv_and_b32 v{b+9+2*i}, s35, v{vB+4*k+i}")
        for i in range(0, 8, 2): a(f"v_pk_add_f32 {vr(b+i,2)}, {vr(b+i,2)}, {vr(b+16+i,2)}")
        for i in range(0, 8, 2): a(f"v_pk_add_f32 {vr(b+i,2)}, {vr(b+i,2)}, {vr(b+8+i,2)}")
        a(f"v_mov_b32 v{b+24}, s36")
        for i in range(8): a(f"v_mul_f32 v{b+8+i}, v{b+i}, v{b+i}")
        for i in range(8): a(f"v_fma_f32 v{b+8+i}, v{b+8+i}, s37, v{b+24}")
        for i in range(8): a(f"v_mul_f32 v{b+8+i}, v{b+8+i}, v{b+i}")
        for i in range(8): a(f"v_exp_f32 v{b+8+i}, v{b+8+i}")
        for i in range(8): a(f"v_add_f32 v{b+8+i}, 1.0, v{b+8+i}")
        for i in range(8): a(f"v_rcp_f32 v{b+8+i}, v{b+8+i}")
        for i in range(8): a(f"v_mul_f32 v{b+i}, v{b+i}, v{b+8+i}")
        for i in range(4): a(f"v_cvt_pk_bf16_f32 v{b+16+i}, v{b+2*i}, v{b+2*i+1}")
        a(f"buffer_store_dwordx4 {vr(b+16,4)}, v{vSt}, {WS}, 0 offen offset:{1024*k}")
    a(f"{name}_end:\ns_endpgm"); kernel_desc(a, name, 160, 80)

def b2_kernels(a, names):
    kernel_begin(a, names[1]); common(a, "b2", 256)
    a("s_load_dwordx2 s[6:7], s[0:1], 96\ns_waitcnt lgkmcnt(0)"); srd(a, S_O, 6, XB); a("s_branch b2_body")
    kernel_begin(a, names[0]); common(a, "b2", 256)
    a("s_waitcnt lgkmcnt(0)"); ws_sub(a, S_O, X2, XB)
    a("b2_body:\ns_load_dwordx4 s[40:43], s[0:1], 80\ns_waitcnt lgkmcnt(0)")
    srd(a, S_WS, 4, WS_SIZE); srd(a, S_A, 40, 2048 * 1536 * 2); srd(a, S_Bv, 42, 2048 * 2)
    sS, sD = 34, 35
    a(f"s_and_b32 s{sS}, s2, 7\ns_lshl_b32 s{sS}, s{sS}, 2\ns_bfe_u32 s36, s2, 0x20003\ns_add_u32 s{sS}, s{sS}, s36\ns_lshr_b32 s{sD}, s2, 5")
    a(f"s_mul_i32 s38, s{S_W}, 40960")
    vDW, vU, vR, vG, vRd, vB, vXr, vFR, vAcc = 4, 6, 8, 12, 15, 18, 20, 32, 64
    P = 336
    tr_setup(a, vDW, vR, 4096, [(S_W, 384 * 4096), (sS, 128)])
    vexpr(a, vU, [(0, 6, 16)], [(sD, 5 * 49152), (S_W, 12288), UU])
    a(f"s_mov_b32 s39, {X1}")
    for k in range(3):
        a(f"v_add_u32 v1, {64*k}, v{LANE}\nv_min_u32 v1, 159, v1\nv_mul_u32_u24 v3, 6554, v1\nv_lshrrev_b32 v3, 16, v3\nv_mul_u32_u24 v7, 10, v3\nv_sub_u32 v1, v1, v7")
        a(f"s_lshl_b32 s{T0}, s{S_W}, 4\nv_add_u32 v3, s{T0}, v3\nv_mul_u32_u24 v{vRd+k}, {P}, v3\nv_lshl_add_u32 v{vRd+k}, v1, 5, v{vRd+k}")
        a(f"s_lshl_b32 s{T0}, s{sS}, 6\nv_add_u32 v3, s{T0}, v3\nv_mul_u32_u24 v{vG+k}, 1280, v3\nv_lshl_add_u32 v{vG+k}, v1, 4, v{vG+k}\ns_mul_i32 s{T0}, s{sD}, 160\nv_add_u32 v{vG+k}, s{T0}, v{vG+k}")
        a(f"v_lshlrev_b32 v3, 1, v3\nbuffer_load_ushort v{144+k}, v3, s[{S_Bv}:{S_Bv+3}], 0 offen")
        a(f"buffer_load_dwordx4 {vr(vXr+4*k,4)}, v{vG+k}, {WS}, s39 offen")
    keep(a, vG + 2, f"v_cmp_gt_u32 vcc, 32, v{LANE}")
    NS = 6
    def issue(ks):
        tr_dma(a, S_A, vDW, 4096, ks, (ks % NS) * 4096)
        for j in range(5): a(f"s_mov_b32 s{T0}, {j * 49152 + ks * 1024}\nbuffer_load_dwordx4 {ar(20*ks+4*j,4)}, v{vU}, {WS}, s{T0} offen")
    for ks in range(NS): issue(ks)
    for ks in range(13):
        if ks < 12:
            a(f"s_waitcnt vmcnt({9 * min(NS - 1, 11 - ks)})")
            for i in range(4):
                for q in range(2): a(f"ds_read_b64_tr_b16 {vr(vFR+16*(ks&1)+4*i+2*q,2)}, v{vR+i} offset:{(ks % NS)*4096 + q*512}")
        if ks > 0:
            for i in range(4):
                for j in range(5):
                    d = vr(vAcc + 20 * i + 4 * j, 4)
                    a(f"v_mfma_f32_16x16x32_bf16 {d}, {ar(20*(ks-1)+4*j,4)}, {vr(vFR+16*((ks-1)&1)+4*i,4)}, {'0' if ks == 1 else d}")
        a("s_waitcnt lgkmcnt(0)")
        if ks + NS < 12: issue(ks + NS)
    vW = 4
    vexpr(a, vW, [(0, 4, P), (4, 2, 16)], [(S_W, 64 * P)])
    a("s_barrier")
    for i in range(4):
        for j in range(5): a(f"ds_write_b128 v{vW}, {vr(vAcc+20*i+4*j,4)} offset:{16*i*P + 64*j}")
        if i % 2: a("s_waitcnt lgkmcnt(0)")
    a("s_barrier\ns_mov_b32 s35, 0xffff0000")
    vX = 32
    for k in range(3):
        for p in range(4):
            for h in range(2): a(f"ds_read_b128 {vr(vX+32*k+8*p+4*h,4)}, v{vRd+k} offset:{p*64*P + 16*h}")
        a("s_waitcnt lgkmcnt(0)")
    for k in range(3):
        b = vX + 32 * k
        for i in range(0, 8, 2): a(f"v_pk_add_f32 {vr(b+i,2)}, {vr(b+i,2)}, {vr(b+8+i,2)}\nv_pk_add_f32 {vr(b+16+i,2)}, {vr(b+16+i,2)}, {vr(b+24+i,2)}")
        for i in range(4): a(f"v_lshlrev_b32 v{b+8+2*i}, 16, v{vXr+4*k+i}\nv_and_b32 v{b+9+2*i}, s35, v{vXr+4*k+i}")
        a(f"v_lshlrev_b32 v{144+k}, 16, v{144+k}")
        for i in range(0, 8, 2): a(f"v_pk_add_f32 {vr(b+i,2)}, {vr(b+i,2)}, {vr(b+16+i,2)}")
        for i in range(8): a(f"v_add_f32 v{b+i}, v{b+i}, v{144+k}")
        for i in range(0, 8, 2): a(f"v_pk_add_f32 {vr(b+i,2)}, {vr(b+i,2)}, {vr(b+8+i,2)}")
        for i in range(4): a(f"v_cvt_pk_bf16_f32 v{b+16+i}, v{b+2*i}, v{b+2*i+1}")
        a(f"buffer_store_dwordx4 {vr(b+16,4)}, v{vG+k}, s[{S_O}:{S_O+3}], 0 offen")
    a("b2_end:\ns_endpgm")
    for n in names: kernel_desc(a, n, 148, 80, accum=148, agpr=240)
```

```python
from asmlib import *
from layout import *
from chain import *

LIN = [(0, 6, 16)]
def fail_exit(a, FAIL):
    a(f"{FAIL}:\ns_mov_b64 exec, 1\nv_mov_b32 v1, {ERR}\nv_mov_b32 v3, 1\nbuffer_atomic_add v3, v1, {WS}, 0 offen\ns_waitcnt vmcnt(0) lgkmcnt(0)\ns_endpgm")
def tmo(a, L, FAIL): a(f"s_sub_u32 s{S_TO}, s{S_TO}, 1\ns_cmp_lg_u32 s{S_TO}, 0\ns_cbranch_scc1 {L}\ns_branch {FAIL}")
def sbase(a, dst, terms):
    saddr(a, T0, terms); a(f"s_add_u32 s{dst}, s{S_PTR}, s{T0}\ns_addc_u32 s{dst+1}, s{S_PTR+1}, 0")

def emit_proj(a, name, kind):
    c = Ctx(a, name)
    sH, sS, sHF, sOUT, sBUF, sFV, sPOL, sPC, sRP = 34, 35, 36, 37, 38, 39, 40, 41, 42
    srdW = {"K": S_WK, "Q": S_WQ, "V": S_WV}[kind]
    isV = kind == "V"
    a(f"s_lshr_b32 s{T0}, s{S_RANK}, 5\ns_sub_u32 s{T0}, s{T0}, 4\ns_lshl_b32 s{T0}, s{T0}, 3\ns_and_b32 s{sH}, s{S_RANK}, 7\ns_add_u32 s{sH}, s{sH}, s{T0}")
    vD, vTR, vHs, vHr, vSt, vFl, vCl, vNEG = 4, 8, 11, 12, 13, 15, 16, 20
    vAcc, vO, vFR = 24, 48, 64
    HB0, HB1 = 122880, 0
    vexpr(a, vHs, LIN, [(S_W, 10240), HF])
    def hdma(sbuf):
        for k0 in range(0, 10, 4):
            a(f"s_add_u32 m0, s{sbuf}, {k0*1024}\ns_add_u32 s{T0}, s{sHF}, {k0*1024}")
            for k in range(k0, min(k0 + 4, 10)):
                a(f"buffer_load_dwordx4 v{vHs}, {WS}, s{T0} offen offset:{(k-k0)*1024} lds")
    a(f"s_mov_b32 s{sHF}, 0\ns_mul_i32 s{sBUF}, s{S_W}, 10240\ns_add_u32 s{sBUF}, s{sBUF}, {HB0}")
    for i in range(3):
        a(f"v_add_u32 v1, {64*i}, v{LANE}\nv_mul_u32_u24 v3, 2731, v1\nv_lshrrev_b32 v3, 16, v3")
        a(f"v_mul_u32_u24 v{vD+i}, 24, v3\nv_sub_u32 v1, v1, v{vD+i}\nv_lshlrev_b32 v1, 4, v1\nv_mul_u32_u24 v{vD+i}, 12288, v3\nv_add_u32 v{vD+i}, v{vD+i}, v1")
        saddr(a, T0, [(sH, 384), (S_W, 8 * 12288)]); a(f"v_add_u32 v{vD+i}, s{T0}, v{vD+i}")
    def wdma(ch):
        a(f"s_mul_i32 s{T1}, s{S_W}, 3072")
        for k in range(5):
            a(f"s_mov_b32 s{T0}, {(160*ch + 32*k) * 12288}")
            for i in range(3):
                a(f"s_add_u32 m0, s{T1}, {(ch & 1) * 61440 + k * 12288 + i * 1024}\ns_nop 0")
                a(f"buffer_load_dwordx4 v{vD+i}, s[{srdW}:{srdW+3}], s{T0} offen lds")
    for tl in range(3):
        if isV:
            vexpr(a, vTR + tl, [(4, 2, 8 * 384), (2, 2, 384), (0, 2, 8)], [(S_W, 96), tl * 32])
        else:
            a(f"s_and_b32 s{T1}, s{S_W}, 1\ns_mul_i32 s{T2}, s{S_W}, 3")
            if tl < 2: a(f"s_add_u32 s{T2}, s{T2}, s{T1}\ns_add_u32 s{T2}, s{T2}, {tl}")
            else: a(f"s_lshl_b32 s{T1}, s{T1}, 1\ns_sub_u32 s{T2}, s{T2}, s{T1}\ns_add_u32 s{T2}, s{T2}, 2")
            a(f"s_lshr_b32 s{T1}, s{T2}, 1\ns_and_b32 s{T2}, s{T2}, 1")
            vexpr(a, vTR + tl, [(4, 2, 8 * 384), (2, 2, 384), (0, 2, 16)], [(T1, 64), (T2, 8)])
            if tl != 1: vexpr(a, vSt + (tl >> 1), LIN, [(sH, 12288), (T1, 1024), (T2, 8), KF if kind == "K" else QF])
    if isV: vexpr(a, vSt, LIN, [(sH, 12288), (S_W, 3072), VT])
    W = lambda tl, ks: ar((ks * 3 + tl) * 4, 4)
    wdma(0); wdma(1); hdma(sBUF)
    for ch in range(4):
        a(f"s_waitcnt vmcnt({[25, 15, 15, 0][ch]})\ns_barrier")
        for k in range(5):
            for tl in range(3):
                for q in range(2):
                    off = (ch & 1) * 61440 + (32 * k + 4 * q) * 384
                    if off < 65536: a(f"ds_read_b64_tr_b16 {ar(((5*ch+k)*3+tl)*4+2*q, 2)}, v{vTR+tl} offset:{off}")
                    else: a(f"v_add_u32 v1, 61440, v{vTR+tl}\nds_read_b64_tr_b16 {ar(((5*ch+k)*3+tl)*4+2*q, 2)}, v1 offset:{off-61440}")
            a("s_waitcnt lgkmcnt(6)")
        a("s_waitcnt lgkmcnt(0)\ns_barrier")
        if ch < 2: wdma(ch + 2)
    kidx = {"K": 0, "V": 1, "Q": 2}[kind]
    vexpr(a, vFl, [(0, 6, 4)], [(sH, 128), FLG + kidx * 4096, (S_L, 0x8000)]); keep(a, vFl, f"v_cmp_gt_u32 vcc, 1, v{LANE}")
    nst = 3 if isV else 4
    if kind == "K":
        nst += 1
        a(f"v_mov_b32 v1, {POL}\nbuffer_load_dword v1, v1, {WS}, 0 offen\ns_waitcnt vmcnt(0)\nv_readfirstlane_b32 s{sPOL}, v1\ns_and_b32 s{sPOL}, s{sPOL}, 1")
        a(f"s_and_b32 s{T1}, s{sH}, 3\ns_mul_i32 s{T1}, s{T1}, 160\ns_mul_i32 s{T2}, s{S_W}, 40\ns_add_u32 s{T1}, s{T1}, s{T2}\nv_add_u32 v3, s{T1}, v{LANE}")
        a(f"v_lshrrev_b32 v{vCl}, 6, v3\nv_lshlrev_b32 v{vCl}, 14, v{vCl}\nv_bfe_u32 v1, v3, 4, 2\nv_lshl_add_u32 v{vCl}, v1, 11, v{vCl}\nv_and_b32 v1, 15, v3\nv_lshl_add_u32 v{vCl}, v1, 4, v{vCl}")
        a(f"s_lshr_b32 s{T1}, s{sH}, 2"); saddr(a, T0, [(T1, 256)]); a(f"v_add_u32 v{vCl}, s{T0}, v{vCl}")
        keep(a, vCl, f"v_cmp_gt_u32 vcc, 40, v{LANE}")
        for i in range(4): a(f"v_mov_b32 v{vNEG+i}, -1")
        saddr(a, sRP, [(S_L, 0x1000000), RPF])
    a(f"v_lshlrev_b32 v{vHr}, 4, v{LANE}\nv_add_u32 v{vHr}, {HB0}, v{vHr}")
    a(f"s_mov_b32 s{sS}, 0\ns_mov_b32 s{sOUT}, 0")
    LOOP = c.lab("loop"); L1 = c.lab("e"); L2 = c.lab("f"); L3 = c.lab("n")
    a(f".p2align 6\n{LOOP}:")
    a(f"s_sub_u32 s{sFV}, s{sS}, 1\ns_cmp_ge_u32 s{sS}, 3\ns_cbranch_scc1 {L1}\ns_mov_b32 s{sFV}, s{sS}\ns_waitcnt vmcnt(0)\n{L1}:")
    a(f"s_waitcnt vmcnt({nst})\ns_barrier")
    RA = 3
    def rd(ks):
        for b in range(2): a(f"ds_read_b128 {vr(vFR + 8*(ks % (RA+1)) + 4*b, 4)}, v{vHr} offset:{(b*20+ks)*1024}")
    for ks in range(RA): rd(ks)
    a(f"s_cmp_lg_u32 s{S_W}, 0\ns_cbranch_scc1 {L2}\nv_mov_b32 v3, s{sFV}\nbuffer_store_dword v3, v{vFl}, {WS}, 0 offen sc1\n{L2}:")
    a(f"s_add_u32 s{sHF}, s{sHF}, 40960\ns_sub_u32 s{T1}, s{sBUF}, {HB0}\ns_add_u32 s{T2}, s{sBUF}, {HB0}\ns_cmp_ge_u32 s{sBUF}, {HB0}\ns_cselect_b32 s{sBUF}, s{T1}, s{T2}")
    a(f"s_cmp_eq_u32 s{sS}, 63\ns_cbranch_scc1 {L3}")
    hdma(sBUF)
    a(f"{L3}:")
    for ks in range(20):
        if ks + RA < 20: rd(ks + RA)
        a(f"s_waitcnt lgkmcnt({2 * min(RA, 19 - ks)})")
        for tl in range(3):
            for b in range(2):
                d = vr(vAcc + 8 * tl + 4 * b, 4); h = vr(vFR + 8 * (ks % (RA+1)) + 4 * b, 4)
                A, B = (h, W(tl, ks)) if isV else (W(tl, ks), h)
                a(f"v_mfma_f32_16x16x32_bf16 {d}, {A}, {B}, {'0' if ks == 0 else d}")
    a(f"v_xor_b32 v{vHr}, {HB0}, v{vHr}")
    if kind == "K":
        a(f"s_add_u32 s{T0}, s{sS}, 1\ns_lshr_b32 s{T1}, s{T0}, 3\ns_xor_b32 s{T1}, s{T1}, s{sPOL}\ns_and_b32 s{T1}, s{T1}, 1\ns_lshl_b32 s{T1}, s{T1}, 13\ns_and_b32 s{T0}, s{T0}, 63\ns_max_u32 s{T0}, s{T0}, s{sS}\ns_lshl_b32 s{T0}, s{T0}, 18\ns_add_u32 s{sPC}, s{T0}, s{T1}\ns_add_u32 s{sPC}, s{sPC}, s{sRP}")
        a(f"buffer_store_dwordx4 {vr(vNEG,4)}, v{vCl}, {WS}, s{sPC} offen sc1")
    nop(a, 7)
    cv = lambda d, s: a(f"v_cvt_pk_bf16_f32 v{d}, v{s}, v{s+1}\nv_cvt_pk_bf16_f32 v{d+1}, v{s+2}, v{s+3}")
    if isV:
        for tl in range(3):
            cv(vO + 4 * tl, vAcc + 8 * tl); cv(vO + 4 * tl + 2, vAcc + 8 * tl + 4)
            a(f"buffer_store_dwordx4 {vr(vO+4*tl,4)}, v{vSt}, {WS}, s{sOUT} offen offset:{tl*1024} sc1")
    else:
        a(f"s_add_u32 s{T0}, s{sOUT}, 6144")
        for b in range(2):
            so = f"s{sOUT}" if b == 0 else f"s{T0}"
            cv(vO + 8 * b, vAcc + 4 * b); cv(vO + 8 * b + 2, vAcc + 8 + 4 * b); cv(vO + 8 * b + 4, vAcc + 16 + 4 * b)
            a(f"buffer_store_dwordx4 {vr(vO+8*b,4)}, v{vSt}, {WS}, {so} offen sc1")
            a(f"buffer_store_dwordx2 {vr(vO+8*b+4,2)}, v{vSt+1}, {WS}, {so} offen sc1")
    a(f"s_add_u32 s{sOUT}, s{sOUT}, {32*12288}\ns_add_u32 s{sS}, s{sS}, 1\ns_cmp_lt_u32 s{sS}, 64\ns_cbranch_scc1 {LOOP}")
    a(f"s_waitcnt vmcnt(0)\ns_barrier\nv_mov_b32 v3, 64\nbuffer_store_dword v3, v{vFl}, {WS}, 0 offen sc1\ns_waitcnt vmcnt(0)\ns_endpgm")

def emit_att(a, name):
    c = Ctx(a, name)
    sH, sS, sO, sO2, sRDY, sC, sFB, sV = 34, 35, 36, 37, 38, 39, 40, 44
    FAIL = c.lab("fail")
    a(f"s_lshr_b32 s{T0}, s{S_RANK}, 5\ns_lshl_b32 s{T0}, s{T0}, 3\ns_and_b32 s{sH}, s{S_RANK}, 7\ns_add_u32 s{sH}, s{sH}, s{T0}")
    vL, vKM, vVM, vCF, vOF, vT = 4, 5, 6, 7, 8, 10
    vMK, vS, vM, vP, vG, vD, vO, vkm, vvm = 20, 36, 52, 60, 68, 72, 88, 96, 120
    aK, aQ, aV = 0, 48, 96
    vexpr(a, vL, LIN, [(sH, 12288)])
    vexpr(a, vKM, [(2, 1, 4 * 64), (3, 1, 2 * 64), (0, 1, 64), (4, 2, 16)], [(sH, 3072), KM])
    vexpr(a, vVM, [(0, 6, 4)], [(sH, 3072), VM])
    fl = FLG; LT = (S_L, 0x8000)
    vexpr(a, vCF, [(0, 6, 4)], [(sH, 128), LT, fl + 3 * 4096])
    vexpr(a, vOF, [(0, 6, 4)], [(sH, 128), (S_W, 4), LT, fl + 4 * 4096]); keep(a, vOF, f"v_cmp_gt_u32 vcc, 1, v{LANE}")
    sbase(a, sFB, [(sH, 128), LT, fl])
    vexpr(a, vT, [(2, 2, 8), (0, 2, 1)]); vexpr(a, vT + 1, [(4, 2, 8)])
    a(f"v_sub_u32 v{vT}, v{vT}, v{vT+1}\nv_mov_b32 v{vT+1}, {hex(f2u(-1e30))}")
    for rb in range(2):
        for b in range(2):
            for r in range(4):
                a(f"v_cmp_gt_i32 vcc, {4*b + r - 4*rb}, v{vT}\ns_nop 1\nv_cndmask_b32 v{vMK+8*rb+4*b+r}, 0, v{vT+1}, vcc")
    for i in range(12): a(f"v_mov_b32 v{vvm+2*i+1}, 0")
    a(f"v_mov_b32 v{vG+1}, 0\nv_mov_b32 v{vG+3}, 0")
    a(f"s_mov_b32 s{sC}, {hex(f2u(192 ** -0.5 * math.log2(math.e)))}\ns_mov_b32 s{sS}, s{S_W}\ns_mov_b32 s{sRDY}, 0")
    LOOP = c.lab("loop"); W1 = c.lab("w"); G1 = c.lab("g"); W2 = c.lab("w"); G2 = c.lab("g")
    a(f"{LOOP}:\ns_mov_b32 s{S_TO}, {TIMEOUT}\ns_mul_i32 s{sO}, s{sS}, {32*12288}\ns_mul_i32 s{sO2}, s{sS}, {32*3072}")
    a(f"{W1}:\ns_cmp_gt_u32 s{sRDY}, s{sS}\ns_cbranch_scc1 {G1}")
    for k in range(3): a(f"s_load_dword s{sV+k}, s[{sFB}:{sFB+1}], {k*4096} glc")
    a(f"s_waitcnt lgkmcnt(0)\ns_min_u32 s{sRDY}, s{sV}, s{sV+1}\ns_min_u32 s{sRDY}, s{sRDY}, s{sV+2}")
    tmo(a, W1, FAIL)
    a(f"{G1}:")
    for base, dst in ((KF, aK), (QF, aQ), (VT, aV)):
        for k0 in range(0, 12, 4):
            a(f"s_add_u32 s{T0}, s{sO}, {base + k0*1024}")
            for k in range(4): a(f"buffer_load_dwordx4 {ar(dst+4*(k0+k),4)}, v{vL}, {WS}, s{T0} offen offset:{k*1024} sc1")
    a("s_waitcnt vmcnt(12)")
    for u in range(6):
        for rb in range(2):
            for b in range(2):
                d = vr(vS + 8 * rb + 4 * b, 4)
                a(f"v_mfma_f32_16x16x32_bf16 {d}, {ar(aK+4*(6*b+u),4)}, {ar(aQ+4*(6*rb+u),4)}, {vr(vMK+8*rb+4*b,4) if u == 0 else d}")
    a(f"v_mov_b32 v{vT+1}, s{sS}\ns_mov_b64 exec, 7")
    a(f"{W2}:\nbuffer_load_dword v{vT}, v{vCF}, {WS}, 0 offen sc1\ns_waitcnt vmcnt(0)\nv_cmp_ge_u32 vcc, v{vT+1}, v{vT}\ns_cbranch_vccz {G2}\ns_sleep 2")
    tmo(a, W2, FAIL)
    a(f"{G2}:\ns_mov_b64 exec, -1")
    for u in range(6): a(f"buffer_load_dwordx4 {vr(vkm+4*u,4)}, v{vKM}, {WS}, s{sO2} offen offset:{u*512} sc1")
    for t in range(12): a(f"buffer_load_dword v{vvm+2*t}, v{vVM}, {WS}, s{sO2} offen offset:{t*256} sc1")
    for u in range(6):
        a(f"s_waitcnt vmcnt({17-u})")
        for rb in range(2):
            d = vr(vM + 4 * rb, 4)
            a(f"v_mfma_f32_16x16x32_bf16 {d}, {vr(vkm+4*u,4)}, {ar(aQ+4*(6*rb+u),4)}, {'0' if u == 0 else d}")
    nop(a, 8)
    def both(f):
        for rb in range(2): f(rb, [vS + 8 * rb + i for i in range(8)] + [vM + 4 * rb, vM + 4 * rb + 1], vT + 2 * rb, vT + 2 * rb + 1)
    def red(op):
        for sw in ("v_permlane16_swap_b32", "v_permlane32_swap_b32"):
            both(lambda rb, x, m, t: a(f"v_mov_b32 v{t}, v{m}"))
            a("s_nop 1")
            both(lambda rb, x, m, t: a(f"{sw} v{t}, v{m}"))
            both(lambda rb, x, m, t: a(f"{op} v{m}, v{m}, v{t}"))
    both(lambda rb, x, m, t: a(f"v_max3_f32 v{m}, v{x[0]}, v{x[1]}, v{x[2]}\nv_max3_f32 v{t}, v{x[3]}, v{x[4]}, v{x[5]}"))
    both(lambda rb, x, m, t: a(f"v_max3_f32 v{m}, v{m}, v{x[6]}, v{x[7]}\nv_max3_f32 v{t}, v{t}, v{x[8]}, v{x[9]}"))
    both(lambda rb, x, m, t: a(f"v_max_f32 v{m}, v{m}, v{t}"))
    red("v_max_f32")
    both(lambda rb, x, m, t: a(f"v_mul_f32 v{m}, s{sC}, v{m}"))
    both(lambda rb, x, m, t: [a(f"v_fma_f32 v{r}, v{r}, s{sC}, -v{m}") for r in x])
    both(lambda rb, x, m, t: [a(f"v_exp_f32 v{r}, v{r}") for r in x])
    both(lambda rb, x, m, t: a(f"v_add_f32 v{m}, v{x[0]}, v{x[1]}\nv_add_f32 v{t}, v{x[2]}, v{x[3]}"))
    for i in range(4, 10, 2): both(lambda rb, x, m, t: a(f"v_add_f32 v{m}, v{m}, v{x[i]}\nv_add_f32 v{t}, v{t}, v{x[i+1]}"))
    both(lambda rb, x, m, t: a(f"v_add_f32 v{m}, v{m}, v{t}"))
    red("v_add_f32")
    both(lambda rb, x, m, t: a(f"v_rcp_f32 v{m}, v{m}"))
    a("s_nop 0")
    both(lambda rb, x, m, t: [a(f"v_mul_f32 v{r}, v{r}, v{m}") for r in x])
    both(lambda rb, x, m, t: [a(f"v_cvt_pk_bf16_f32 v{vP+4*rb+i}, v{x[2*i]}, v{x[2*i+1]}") for i in range(4)] + [a(f"v_cvt_pk_bf16_f32 v{vG+2*rb}, v{x[8]}, v{x[9]}")])
    a(f"s_waitcnt vmcnt(0)\ns_add_u32 s{sO}, s{sO}, {OF}")
    def pv(u):
        for kind in range(2):
            for rb in range(2):
                for h in range(2):
                    T = 2 * u + h; d = vr((vD if u % 2 == 0 else vS) + 8 * rb + 4 * h, 4)
                    if kind == 0: a(f"v_mfma_f32_16x16x32_bf16 {d}, {ar(aV+4*T,4)}, {vr(vP+4*rb,4)}, 0")
                    else: a(f"v_mfma_f32_16x16x16_bf16 {d}, {vr(vvm+2*T,2)}, {vr(vG+2*rb,2)}, {d}")
    def out(u):
        for rb in range(2):
            s_ = (vD if u % 2 == 0 else vS) + 8 * rb
            for i in range(4): a(f"v_cvt_pk_bf16_f32 v{vO+4*rb+i}, v{s_+2*i}, v{s_+2*i+1}")
            k = 6 * rb + u
            a(f"s_add_u32 s{T0}, s{sO}, {(k >> 2) * 4096}")
            a(f"buffer_store_dwordx4 {vr(vO+4*rb,4)}, v{vL}, {WS}, s{T0} offen offset:{(k & 3) * 1024} sc1")
    pv(0)
    for u in range(1, 6): pv(u); out(u - 1)
    nop(a, 8); out(5)
    a(f"s_add_u32 s{sS}, s{sS}, 1\nv_mov_b32 v{vT}, s{sS}\ns_waitcnt vmcnt(0)\nbuffer_store_dword v{vT}, v{vOF}, {WS}, 0 offen sc1")
    a(f"s_add_u32 s{sS}, s{sS}, 3\ns_cmp_lt_u32 s{sS}, 64\ns_cbranch_scc1 {LOOP}\ns_waitcnt vmcnt(0)\ns_endpgm")
    fail_exit(a, FAIL)

def emit_oproj(a, name):
    c = Ctx(a, name)
    sY, sCS, sS, sO, sA, sFB, sV, sFO = 34, 35, 36, 37, 38, 40, 44, 46
    FAIL = c.lab("fail")
    a(f"s_lshr_b32 s{sY}, s{S_RANK}, 5\ns_sub_u32 s{sY}, s{sY}, 4\ns_and_b32 s{sCS}, s{S_RANK}, 7")
    vD, vTR, vL, vW, vR, vAt = 4, 9, 10, 11, 12, 14
    vAcc, vFR, vX = 24, 64, 160
    for i in range(5):
        a(f"v_add_u32 v1, {64*i}, v{LANE}\nv_mul_u32_u24 v3, 6554, v1\nv_lshrrev_b32 v3, 16, v3")
        a(f"v_mul_u32_u24 v{vD+i}, 10, v3\nv_sub_u32 v1, v1, v{vD+i}\nv_lshlrev_b32 v1, 4, v1\nv_mul_u32_u24 v{vD+i}, 1280, v3\nv_add_u32 v{vD+i}, v{vD+i}, v1")
        saddr(a, T0, [(sY, 1536 * 1280), (S_W, 384 * 1280), (sCS, 160)]); a(f"v_add_u32 v{vD+i}, s{T0}, v{vD+i}")
    vexpr(a, vTR, [(4, 2, 4 * 160), (2, 2, 160), (0, 2, 8)], [(S_W, 40960)])
    def wdma(ks):
        a(f"s_mul_i32 s{T1}, s{S_W}, 40960\ns_mov_b32 s{T0}, {32 * ks * 1280}")
        for i in range(5):
            a(f"s_add_u32 m0, s{T1}, {(ks % 8) * 5120 + i * 1024}\ns_nop 0")
            a(f"buffer_load_dwordx4 v{vD+i}, s[{S_WO}:{S_WO+3}], s{T0} offen lds")
    W = lambda tl, ks: ar((ks * 5 + tl) * 4, 4)
    for ks in range(8): wdma(ks)
    for ks in range(12):
        a(f"s_waitcnt vmcnt({5 * min(7, 11 - ks)})")
        for tl in range(5):
            for q in range(2): a(f"ds_read_b64_tr_b16 {ar((ks*5+tl)*4+2*q,2)}, v{vTR} offset:{(ks % 8) * 5120 + q * 16 * 160 + tl * 32}")
        a("s_waitcnt lgkmcnt(0)")
        if ks + 8 < 12: wdma(ks + 8)
    a("s_barrier")
    vexpr(a, vL, LIN, [(sY, 8 * 12288), (S_W, 2 * 12288), OF])
    PITCH = 336
    vexpr(a, vW, [(2, 2, 8 * PITCH), (0, 2, PITCH), (4, 2, 16)], [(S_W, 32 * PITCH)])
    for k in range(2):
        a(f"v_add_u32 v1, {64*k}, v{LANE}\nv_min_u32 v1, 79, v1\nv_mul_u32_u24 v3, 6554, v1\nv_lshrrev_b32 v3, 16, v3\nv_mul_u32_u24 v{vR+k}, 10, v3\nv_sub_u32 v1, v1, v{vR+k}")
        a(f"s_lshl_b32 s{T0}, s{S_W}, 3\nv_add_u32 v3, s{T0}, v3")
        a(f"v_mul_u32_u24 v{vAt+k}, 1280, v3\nv_lshl_add_u32 v{vAt+k}, v1, 4, v{vAt+k}\nv_mul_u32_u24 v{vR+k}, {PITCH}, v3\nv_lshl_add_u32 v{vR+k}, v1, 5, v{vR+k}")
    keep(a, vAt + 1, f"v_cmp_gt_u32 vcc, 16, v{LANE}")
    sbase(a, sFB, [(sY, 8 * 128), (S_W, 2 * 128), FLG + 4 * 4096, (S_L, 0x8000)])
    saddr(a, sA, [(sCS, 160), (sY, OP_STRIDE), OP])
    a(f"s_mov_b32 s{sS}, 0\ns_mov_b32 s{sO}, 0")
    LOOP = c.lab("loop"); W1 = c.lab("w"); G1 = c.lab("g"); NP = c.lab("np"); BODY = c.lab("b")
    PRE = 5; sPRE = 39
    def flagload():
        a(f"s_and_b32 s{sFO}, s{sS}, 3\ns_lshl_b32 s{sFO}, s{sFO}, 2\ns_add_u32 s{sFO+1}, s{sFO}, 128")
        a(f"s_load_dword s{sV}, s[{sFB}:{sFB+1}], s{sFO} glc\ns_load_dword s{sV+1}, s[{sFB}:{sFB+1}], s{sFO+1} glc")
    def flagtest(): a(f"s_waitcnt lgkmcnt(0)\ns_min_u32 s{T0}, s{sV}, s{sV+1}\ns_cmp_gt_u32 s{T0}, s{sS}")
    def ld(ks):
        for b in range(2):
            k = (ks // 6) * 12 + b * 6 + ks % 6
            a(f"s_add_u32 s{T0}, s{sO}, {(k >> 2) * 4096}")
            a(f"buffer_load_dwordx4 {vr(vFR+8*ks+4*b,4)}, v{vL}, {WS}, s{T0} offen offset:{(k & 3) * 1024} sc1")
    a(f".p2align 6\n{LOOP}:\ns_mov_b32 s{S_TO}, {TIMEOUT}\n{W1}:")
    flagload(); flagtest(); a(f"s_cbranch_scc1 {G1}\ns_sleep 1")
    tmo(a, W1, FAIL)
    a(f"{G1}:")
    for ks in range(PRE): ld(ks)
    a(f"{BODY}:\ns_add_u32 s{sS}, s{sS}, 1")
    for ks in range(12):
        if ks + PRE < 12: ld(ks + PRE)
        if ks == 8: flagload()
        a(f"s_waitcnt vmcnt({2 * min(PRE, 11 - ks)})")
        for tl in range(5):
            for b in range(2):
                d = vr(vAcc + 8 * tl + 4 * b, 4)
                a(f"v_mfma_f32_16x16x32_bf16 {d}, {W(tl, ks)}, {vr(vFR+8*ks+4*b,4)}, {'0' if ks == 0 else d}")
    a(f"s_add_u32 s{sO}, s{sO}, {32*12288}")
    flagtest(); a(f"s_cselect_b32 s{sPRE}, 1, 0\ns_cbranch_scc0 {NP}")
    for ks in range(PRE): ld(ks)
    a(f"{NP}:")
    a("s_barrier")
    nop(a, 6)
    for tl in range(5):
        for b in range(2): a(f"ds_write_b128 v{vW}, {vr(vAcc+8*tl+4*b,4)} offset:{b*4*PITCH + tl*64}")
    a("s_waitcnt lgkmcnt(0)\ns_barrier")
    for k in range(2):
        for p in range(4):
            for h in range(2): a(f"ds_read_b128 {vr(vX+32*k+8*p+4*h,4)}, v{vR+k} offset:{p*32*PITCH+16*h}")
        a("s_waitcnt lgkmcnt(0)")
    for k in range(2):
        b = vX + 32 * k
        for i in range(0, 8, 2): a(f"v_pk_add_f32 {vr(b+i,2)}, {vr(b+i,2)}, {vr(b+8+i,2)}\nv_pk_add_f32 {vr(b+16+i,2)}, {vr(b+16+i,2)}, {vr(b+24+i,2)}")
        for i in range(0, 8, 2): a(f"v_pk_add_f32 {vr(b+i,2)}, {vr(b+i,2)}, {vr(b+16+i,2)}")
        for i in range(4): a(f"v_cvt_pk_bf16_f32 v{b+8+i}, v{b+2*i}, v{b+2*i+1}")
        a(f"buffer_store_dwordx4 {vr(b+8,4)}, v{vAt+k}, {WS}, s{sA} offen")
    a(f"s_add_u32 s{sA}, s{sA}, {32*1280}\ns_cmp_lg_u32 s{sPRE}, 0\ns_cbranch_scc1 {BODY}\ns_cmp_lt_u32 s{sS}, 64\ns_cbranch_scc1 {LOOP}")
    a("s_waitcnt vmcnt(0)\ns_endpgm")
    fail_exit(a, FAIL)
```

```python
import sys
from asmlib import *
from akernel import layer_a_kernel
from small import *
KN = "interleave_layers__memory_aug_recurrent_mem_tr__mixer_token_mlp__prompt"
DEFAULT = dict(lgap=8, preSide=30, sdepth=1, mspin0=60, oflag=2, pflag=2, mflag=0, preS=32)
def gen(opt=None):
    opt = dict(DEFAULT, **(opt or {}))
    a = Asm()
    hdr = [l.rstrip("\n") for l in open(f"cdna_kernels/{KN}.s.ref") if l.startswith(";") and "launch" not in l.lower() and "Harness parses" not in l] if opt.get("hdr", 1) else []
    a.lines += hdr
    L = [("prep_kernel", 257, 128, 64), ("la0_kernel", 256, 256, 163840), ("lnb0_kernel", 256, 128, 0), ("b1_kernel", 240, 256, 163840), ("b20_kernel", 256, 256, 163840),
         ("lna_kernel", 256, 128, 0), ("la1_kernel", 256, 256, 163840), ("lnb1_kernel", 256, 128, 0), ("b1_kernel", 240, 256, 163840), ("b21_kernel", 256, 256, 163840)]
    for n, g, b, lds in L: a.lines.append(f"; @launch kernel={n} grid=({g},1,1) block=({b},1,1) lds={lds}")
    a('.amdgcn_target "amdgcn-amd-amdhsa--gfx950"')
    prep_kernel(a, "prep_kernel"); lna_kernel(a, "lna_kernel"); lnb_kernels(a, ["lnb0_kernel", "lnb1_kernel"])
    b1_kernel(a, "b1_kernel"); b2_kernels(a, ["b20_kernel", "b21_kernel"])
    layer_a_kernel(a, ["la0_kernel", "la1_kernel"], opt)
    return a.text()
if __name__ == "__main__":
    out = sys.argv[1] if len(sys.argv) > 1 else f"cdna_kernels/{KN}.s"
    opt = eval(sys.argv[2]) if len(sys.argv) > 2 else {}
    open(out, "w").write(gen(opt))
```

```python
from asmlib import *
from layout import *
from chain import *
from workers import *
import small

def layer_a_kernel(a, names, opt):
    RT["on"] = bool(opt.get("rt"))
    for l, n in reversed(list(enumerate(names))):
        kernel_begin(a, n)
        a("s_cmp_ge_u32 s2, 256\ns_cbranch_scc1 la_exit")
        if RT["on"]: a("s_memrealtime s[92:93]")
        a(f"s_mov_b32 s{S_L}, {l}")
        a("s_load_dwordx4 s[4:7], s[0:1], 104\ns_load_dwordx4 s[44:47], s[0:1], 0\ns_load_dwordx8 s[36:43], s[0:1], 16\ns_load_dwordx2 s[48:49], s[0:1], 64\ns_load_dwordx2 s[50:51], s[0:1], 80")
        a(f"v_and_b32 v2, 63, v0\nv_lshrrev_b32 v1, 6, v0\ns_getreg_b32 s34, hwreg(HW_REG_XCC_ID)\ns_and_b32 s34, s34, 7\nv_readfirstlane_b32 s{S_W}, v1\ns_waitcnt lgkmcnt(0)")
        if l: a(f"s_add_u32 s44, s6, {X2}\ns_addc_u32 s45, s7, 0\ns_branch la_body")
    a("la_body:")
    srd(a, S_DBG, 4, 256); a("s_mov_b64 s[4:5], s[6:7]")
    srd(a, S_WS, 4, WS_SIZE); srd(a, S_X, 44, XB); srd(a, S_MEM, 46, 10240)
    srd(a, S_WQ, 36, W_BYTES); srd(a, S_WK, 38, W_BYTES); srd(a, S_WV, 40, W_BYTES); srd(a, S_WO, 42, W_BYTES)
    srd(a, S_W1, 48, 2048 * 1536 * 2); srd(a, S_W2, 50, 2048 * 1536 * 2)
    DBG = f"s[{S_DBG}:{S_DBG+3}]"
    a(f"s_mov_b32 s{S_FB}, 0\ns_mov_b32 s{S_POL}, 0\ns_cmp_ge_u32 s{S_W}, 2\ns_cbranch_scc1 la_ln\ns_cmp_eq_u32 s{S_W}, 1\ns_cbranch_scc1 la_probe")
    a(f"s_lshl_b32 s35, s34, 5\nv_mov_b32 v20, 1\ns_mov_b64 exec, 1\nbuffer_atomic_add v20, off, {DBG}, s35 sc0\nv_mov_b32 v21, 0\ns_lshl_b32 s35, s2, 7\ns_add_u32 s35, s35, {MBX}\nbuffer_store_dword v21, off, {WS}, s35 sc1\ns_mov_b64 exec, -1\ns_branch la_clr")
    a("la_probe:\ns_lshr_b32 s35, s2, 6\ns_lshl_b32 s35, s35, 14\ns_and_b32 s36, s2, 63\ns_lshl_b32 s36, s36, 7\ns_add_u32 s35, s35, s36")
    a(f"s_add_u32 s35, s35, {RPF + 0x70000}\ns_add_u32 s36, s4, s35\ns_addc_u32 s37, s5, 0\nv_lshlrev_b32 v3, 13, v2\ns_mov_b64 exec, 3\nbuffer_store_dword v2, v3, {WS}, s35 offen sc1\ns_mov_b64 exec, -1\ns_mov_b32 s40, 0\ns_waitcnt vmcnt(0)")
    a("s_mov_b32 s38, -1\ns_mov_b32 s39, -1\ns_memtime s[42:43]\ns_waitcnt lgkmcnt(0)")
    for k in range(4):
        a(f"s_load_dword s41, s[36:37], {0x2000 * (k & 1)} glc\ns_mov_b32 s40, s42\ns_waitcnt lgkmcnt(0)\ns_memtime s[42:43]\ns_waitcnt lgkmcnt(0)\ns_sub_u32 s40, s42, s40\ns_min_u32 s{38 + (k & 1)}, s{38 + (k & 1)}, s40")
    a("s_cmp_gt_u32 s38, s39\ns_cselect_b32 s40, 1, 0\ns_lshr_b32 s41, s34, 2\ns_xor_b32 s40, s40, s41\nv_mov_b32 v20, s40")
    a(f"la_clr:\ns_lshl_b32 s{T0}, s2, 7\nv_add_u32 v4, s{T0}, v0\nv_lshlrev_b32 v4, 4, v4")
    for i in range(4): a(f"v_mov_b32 v{8+i}, -1")
    a(f"v_cmp_gt_u32 vcc, 0x30000, v4\ns_mov_b32 s{T0}, {RI}\ns_mov_b32 s{T1}, {RI + 0x80000}\nv_cndmask_b32 v12, 0, -1, vcc")
    a(f"buffer_store_dwordx4 v[8:11], v4, {WS}, s{T0} offen sc1\nbuffer_store_dwordx4 v[8:11], v4, {WS}, s{T1} offen sc1")
    a(f"v_mov_b32 v13, v12\nv_mov_b32 v14, v12\nv_mov_b32 v15, v12\nv_cmp_gt_u32 vcc, 0x40000, v4\nv_add_u32 v5, {RPF}, v4\nv_subrev_u32 v6, 0x40000, v4\nv_cndmask_b32 v5, v6, v5, vcc")
    a(f"v_mov_b32 v6, {OOB}\ns_mov_b32 s{T0}, {RI + 0x100000}\nv_cndmask_b32 v6, v6, v4, vcc")
    a(f"buffer_store_dwordx4 v[12:15], v5, {WS}, 0 offen sc1\nbuffer_store_dwordx4 v[8:11], v6, {WS}, s{T0} offen sc1")
    assert RING_END == RI + 0x140000 and CTL_END == 0x40000
    a(f"s_lshl_b32 s{T0}, s{S_W}, 2\ns_waitcnt vmcnt(5)\nv_mov_b32 v3, s{T0}\ns_mov_b64 exec, 1\nds_write_b32 v3, v20\ns_mov_b64 exec, -1\ns_waitcnt lgkmcnt(0)\ns_branch la_tk")
    a(f"la_ln:\ns_sub_u32 s{S_W}, s{S_W}, 2")
    small.ln_body(a, "A", S_X, "sc1")
    a(f"s_add_u32 s{S_W}, s{S_W}, 2")
    a(f"la_tk:\ns_barrier\nv_mov_b32 v3, 0\nds_read_b64 v[4:5], v3\ns_getreg_b32 s34, hwreg(HW_REG_XCC_ID)\ns_and_b32 s34, s34, 7\ns_waitcnt lgkmcnt(0)\nv_readfirstlane_b32 s{S_TK}, v4\nv_readfirstlane_b32 s{S_POL}, v5\ns_barrier\ns_lshl_b32 s{S_POL}, s{S_POL}, 16\ns_add_u32 s{S_POL}, s{S_POL}, 1")
    a(f"s_lshl_b32 s{S_RANK}, s34, 5\ns_add_u32 s{S_RANK}, s{S_RANK}, s{S_TK}\ns_cmp_lt_u32 s{S_TK}, 32\ns_cbranch_scc1 la_role")
    a("s_waitcnt vmcnt(0)\ns_barrier"); arrive(a); census(a)
    a("la_exit:\ns_endpgm")
    a(f"la_arrive:\ns_or_b32 s{T2}, s{S_W}, s{S_FB}\ns_cmp_lg_u32 s{T2}, 0\ns_cbranch_scc1 la_cret")
    a(f"s_mov_b32 s{T2}, s{S_POL}\ns_atomic_add s{T2}, s[{S_DBG}:{S_DBG+1}], 132 glc\ns_waitcnt lgkmcnt(0)\ns_add_u32 s{S_POL}, s{S_POL}, s{T2}\ns_and_b32 s{T2}, s{S_POL}, 0xffff\ns_cmp_lg_u32 s{T2}, 256\ns_cbranch_scc1 la_cret")
    a(f"v_lshlrev_b32 v1, 2, v{LANE}\nbuffer_load_dword v250, v1, {DBG}, 0 offen sc1\ns_cmp_gt_u32 s{S_POL}, {(128 << 16) + 256}\ns_cselect_b32 s{S_POL}, 3, 1")
    if "pol" in opt: a(f"s_mov_b32 s{S_POL}, {1 + 2 * opt['pol']}")
    a(f"v_and_b32 v1, 7, v{LANE}\nv_cmp_eq_u32 vcc, 0, v1\ns_waitcnt vmcnt(0)\nv_cmp_ne_u32 s[{T2}:{T3}], 32, v250\ns_and_b64 vcc, vcc, s[{T2}:{T3}]\ns_cselect_b32 s{T2}, 4, {4 if opt.get('force_fb') else 0}\ns_or_b32 s{S_POL}, s{S_POL}, s{T2}")
    a(f"v_lshlrev_b32 v1, 7, v{LANE}\nv_mov_b32 v250, s{S_POL}")
    for k in range(4): a(f"s_mov_b32 s{T2}, {MBX + 8192 * k}\nbuffer_store_dword v250, v1, {WS}, s{T2} offen sc1")
    a(f"s_setpc_b64 s[{T0}:{T1}]")
    a(f"la_census:\ns_cmp_lg_u32 s{S_FB}, 0\ns_cbranch_scc1 la_cret\ns_mov_b32 s{S_TO}, {TIMEOUT}\ns_lshl_b32 s{T2}, s2, 7\ns_add_u32 s{T2}, s{T2}, {MBX}")
    a(f"la_cpoll:\nbuffer_load_dword v3, off, {WS}, s{T2} sc1\ns_waitcnt vmcnt(0)\nv_readfirstlane_b32 s{T3}, v3\ns_cmp_lg_u32 s{T3}, 0\ns_cbranch_scc1 la_call")
    a(f"s_sleep 2\ns_sub_u32 s{S_TO}, s{S_TO}, 1\ns_cmp_lg_u32 s{S_TO}, 0\ns_cbranch_scc1 la_cpoll\ns_endpgm")
    a(f"la_call:\ns_bfe_u32 s{S_POL}, s{T3}, 0x10001\ns_and_b32 s{T3}, s{T3}, 4\ns_cbranch_scc1 la_redo\nla_cret:\ns_setpc_b64 s[{T0}:{T1}]")
    a(f"la_redo:\nv_lshlrev_b32 v1, 2, v{LANE}\nbuffer_load_dword v3, v1, {DBG}, 0 offen sc1\ns_getreg_b32 s34, hwreg(HW_REG_XCC_ID)\ns_and_b32 s34, s34, 7\ns_mov_b32 s{S_RANK}, s{S_TK}\ns_mov_b32 s{S_FB}, 1\ns_waitcnt vmcnt(0)")
    for x in range(7): a(f"v_readlane_b32 s36, v3, {8*x}\ns_cmp_gt_u32 s34, {x}\ns_cselect_b32 s36, s36, 0\ns_add_u32 s{S_RANK}, s{S_RANK}, s36")
    if opt.get("force_fb"): a(f"s_mov_b32 s{S_RANK}, s2")
    a("s_waitcnt vmcnt(0) lgkmcnt(0)\ns_barrier")
    a("la_role:")
    rtstamp(a, 0, 92); rtstamp(a, 1)
    a(f"s_and_b32 s35, s{S_RANK}, 31\ns_cmp_ge_u32 s{S_RANK}, 128\ns_cbranch_scc1 la_wk\ns_cmp_ge_u32 s35, 24\ns_cbranch_scc1 la_att")
    a(f"s_cmp_lg_u32 s{S_FB}, 0\ns_cbranch_scc1 la_fb")
    o = dict(opt, flags=1)
    emit_chain(a, "lan", False, o)
    a("la_fb:"); emit_chain(a, "laf", True, o)
    a("la_att:"); emit_att(a, "laa", opt)
    a("la_wk:\ns_cmp_lt_u32 s35, 24\ns_cbranch_scc1 la_proj")
    emit_oproj(a, "lao")
    a("la_proj:"); emit_proj(a, "lap", opt)
    for n in names: kernel_desc(a, n, 256, accum=256, agpr=256)
```

```python
from asmlib import *
from layout import *
import math, struct

S_PTR = 4
S_WS = 8; S_WQ = 12; S_WK = 16; S_WV = 20; S_WO = 24; S_MEM = 28
S_W = 32; S_RANK = 33
S_FB = 3
S_POL = 6; S_TK = 7
S_X = 72; S_W1 = 76; S_W2 = 80
S_DBG = 84
T0, T1, T2, T3 = 60, 61, 62, 63
S_L = 65
S_TO = 64
TIMEOUT = 400000
LANE = 2
WS = f"s[{S_WS}:{S_WS+3}]"

def f2u(x): return struct.unpack("<I", struct.pack("<f", x))[0]

class Ctx:
    def __init__(self, a, name):
        self.a = a; self.name = name
    def lab(self, b): return self.a.label(self.name + "_" + b)

def saddr(a, dst, terms):
    c = sum(t for t in terms if isinstance(t, int))
    a(f"s_mov_b32 s{dst}, {c & 0xffffffff}")
    for t in terms:
        if not isinstance(t, int):
            a(f"s_mul_i32 s{T3}, s{t[0]}, {t[1]}\ns_add_u32 s{dst}, s{dst}, s{T3}")

def vexpr(a, dst, fields, terms=(), tmp=1):
    first = True
    for (sh, bits, mul) in fields:
        d = dst if first else tmp
        a(f"v_bfe_u32 v{d}, v{LANE}, {sh}, {bits}")
        a(f"v_mul_u32_u24 v{d}, {mul}, v{d}")
        if not first: a(f"v_add_u32 v{dst}, v{dst}, v{tmp}")
        first = False
    if terms:
        saddr(a, T0, terms); a(f"v_add_u32 v{dst}, s{T0}, v{dst}")

def keep(a, dst, cond, tmp=1, other=OOB):
    a(cond); a(f"v_mov_b32 v{tmp}, {other}\ns_nop 0\nv_cndmask_b32 v{dst}, v{tmp}, v{dst}, vcc")
def keepbit(a, dst, bit, want, tmp=1):
    keep(a, dst, f"v_bfe_u32 v{tmp}, v{LANE}, {bit}, 1\nv_cmp_eq_u32 vcc, {want}, v{tmp}", tmp)
def smod(a, r, n, times=1):
    for _ in range(times): a(f"s_sub_u32 s{T3}, s{r}, {n}\ns_cmp_ge_u32 s{r}, {n}\ns_cselect_b32 s{r}, s{T3}, s{r}")
def nop(a, n):
    while n > 0:
        k = min(n, 16); a(f"s_nop {k-1}"); n -= k

RT = {"on": False}
def cystamp(a, i):
    if RT["on"]: a("s_memtime s[90:91]\ns_waitcnt lgkmcnt(0)"); rtstamp(a, i, 90)
def rtstamp(a, i, sreg=None):
    if not RT["on"]: return
    if sreg is None: a("s_memrealtime s[90:91]\ns_waitcnt lgkmcnt(0)"); sreg = 90
    saddr(a, T0, [(S_RANK, 256), (S_W, 64), (S_L, 0x10000), STAMP + 0x800000 + 4 * i])
    a(f"v_mov_b32 v1, s{sreg}\ns_mov_b64 exec, 1\nbuffer_store_dword v1, off, {WS}, s{T0}\ns_mov_b64 exec, -1")

def arrive(a):
    a(f"s_call_b64 s[{T0}:{T1}], la_arrive")
def census(a):
    a(f"s_call_b64 s[{T0}:{T1}], la_census")

def emit_chain(a, name, fb, opt):
    c = Ctx(a, name)
    isc = "sc1" if fb else ""
    stamps = opt.get("stamps", 0); flags = opt.get("flags"); nocheck = opt.get("nocheck")
    oflag = opt.get("oflag"); mflag = opt.get("mflag"); xflag = opt.get("xflag")
    NSEG = 64
    sG, sJ, sH, sT, sX, sJF, sGL, sS = 34, 35, 36, 37, 38, 39, 40, 41
    sI0, sI1, sI2, sI3 = 42, 43, 44, 45
    sP0, sPc, sKV, sKM, sFLIP, sPOL, sSEQ, sC = 46, 47, 48, 49, 50, 51, 52, 53
    sB = 54
    sGF, sJH, sJS = 57, 58, 59
    sOWN, sFM, sXB, sXV, sXO = 66, 68, 70, 88, 96
    ST = 12
    def stamp(i):
        if stamps and (i == 0 or i in opt.get("sel", range(8))): a(f"s_memtime s[{ST+2*i}:{ST+2*i+1}]")
    a(f"s_lshr_b32 s{sX}, s{S_RANK}, 5\ns_and_b32 s{sJ}, s{S_RANK}, 31")
    a(f"s_cmp_ge_u32 s{sJ}, 12\ns_cselect_b32 s{sGL}, 1, 0"); smod(a, sJ, 12)
    a(f"s_lshl_b32 s{sG}, s{sX}, 1\ns_add_u32 s{sG}, s{sG}, s{sGL}\ns_xor_b32 s{sGF}, s{sG}, 1")
    a(f"s_mul_i32 s{T0}, s{sJ}, 86\ns_lshr_b32 s{T0}, s{T0}, 8")
    a(f"s_mul_i32 s{T1}, s{T0}, 3\ns_sub_u32 s{sT}, s{sJ}, s{T1}")
    a(f"s_lshl_b32 s{sH}, s{sG}, 2\ns_add_u32 s{sH}, s{sH}, s{T0}")
    a(f"s_sub_u32 s{T0}, s{sJ}, 2\ns_cmp_ge_u32 s{sJ}, 10\ns_cselect_b32 s{sJF}, s{T0}, s{sJ}")
    a(f"s_add_u32 s{sJH}, s{sJF}, 5"); smod(a, sJH, 10)
    a(f"s_cmp_ge_u32 s{sJ}, 10\ns_cselect_b32 s{sJS}, s{sJ}, s{sJH}")
    a(f"s_mov_b32 s{sB}, 0xff00ff00\ns_mov_b32 s{sB+1}, s{sB}\ns_not_b32 s{T0}, s{sB}\ns_cmp_eq_u32 s{sGL}, 0\ns_cselect_b32 s{sOWN}, s{sB}, s{T0}\ns_mov_b32 s{sOWN+1}, s{sOWN}")
    def rot(ph, n):
        a(f"s_mul_i32 s{T0}, s{S_W}, 3\ns_min_u32 s{T0}, s{T0}, {n-3}\ns_add_u32 s{T0}, s{T0}, {ph}")
        if n == 10: a(f"s_add_u32 s{T0}, s{T0}, s{sJH}")
        smod(a, T0, n, 2 if n == 10 else 1)
    WA_QK, WA_O, WV_V = 0, 160, 176
    vDQ, vDO, vTR = 3, 4, 5
    vexpr(a, vDQ, [(3, 3, 12288), (0, 3, 16)], [(sH, 384), (sT, 128), (S_W, 8 * 12288)])
    vexpr(a, vDO, [(3, 3, 1280), (0, 3, 16)], [(sGF, 768 * 1280), (sJF, 128), (S_W, 8 * 1280)])
    vexpr(a, vTR, [(4, 1, 16 * 128), (5, 1, 4 * 128), (3, 1, 32 * 128), (2, 1, 128), (0, 2, 8)], [(S_W, 32)])
    def dma(srd_, vsrc, rowbytes, k0, k1, ldsbase):
        a(f"s_lshl_b32 s{T1}, s{S_W}, 10")
        for k in range(k0, k1):
            a(f"s_add_u32 m0, s{T1}, {ldsbase + (k - k0) * 4096}")
            a(f"s_mov_b32 s{T0}, {k * 32 * rowbytes}")
            a(f"buffer_load_dwordx4 v{vsrc}, s[{srd_}:{srd_+3}], s{T0} offen lds")
    def trread(nfrag, ldsbase, dst):
        for ph in range(nfrag):
            rot(ph, nfrag)
            a(f"s_lshl_b32 s{T0}, s{T0}, 13\ns_add_u32 s{T0}, s{T0}, {ldsbase}"); smod(a, T0, 163840)
            a(f"v_add_u32 v1, s{T0}, v{vTR}")
            for q in range(4):
                a(f"ds_read_b64_tr_b16 {dst(ph, q)}, v1 offset:{(8 * (q >> 1) + 2 * (q & 1)) * 128}")
            if ph % 3 == 2: a("s_waitcnt lgkmcnt(0)")
        a("s_waitcnt lgkmcnt(0)\ns_barrier")
    dma(S_WQ, vDQ, 12288, 0, 20, 0)
    dma(S_WK, vDQ, 12288, 0, 20, 81920)
    a("s_waitcnt vmcnt(20)\ns_barrier")
    trread(10, 0, lambda ph, q: ar(WA_QK + 16 * ph + 2 * q, 2))
    arrive(a)
    dma(S_WV, vDQ, 12288, 0, 20, 0)
    a("s_waitcnt vmcnt(20)\ns_barrier")
    trread(10, 81920, lambda ph, q: ar(WA_QK + 16 * ph + 8 + 2 * q, 2))
    dma(S_WO, vDO, 1280, 0, 20, 81920)
    a("s_waitcnt vmcnt(20)\ns_barrier")
    trread(10, 0, lambda ph, q: vr(WV_V + 8 * ph + 2 * q, 2))
    dma(S_WO, vDO, 1280, 20, 24, 0)
    census(a)
    a("s_waitcnt vmcnt(0)\ns_barrier")
    trread(12, 81920, lambda ph, q: ar(WA_O + 8 * ph + 2 * q, 2))
    rtstamp(a, 2)
    WQ = lambda ph: ar(WA_QK + 16 * ph, 8)
    WK = lambda ph: ar(WA_QK + 16 * ph + 8, 8)
    WV = lambda ph: vr(WV_V + 8 * ph, 8)
    WO = lambda ph: ar(WA_O + 8 * ph, 8)
    vIDX = 3
    vMld = 4
    vOld = 7
    vLM = 8
    vLO = 18
    vZw, vVw, vPst, vVMst, vSEQ = 30, 31, 32, 33, 34
    vA = 35
    vCK = 46
    vNEG = 48
    vID = 52
    vSTP, vSTI, vSTD = 56, 57, 58
    vQ, vK, vV, vF = 60, 64, 68, 72
    vKV = 76
    vKVn = 92
    vVM = 108
    vG = 116
    vT = 118
    vFR = 128
    LM, LO, LZ, LV, LS, LSTAMP = 0, 12288, 24576, 27648, 28672, 32768
    ZP = 40
    a(f"v_mov_b32 v{vIDX}, 0x44444444\nv_mov_b32 v1, 0xeeeeeeee\nv_cndmask_b32 v{vIDX}, v{vIDX}, v1, s[{sB}:{sB+1}]")
    MFR = [(3, 1, 512), (4, 2, 128), (0, 3, 16)]
    for ph in range(10):
        rot(ph, 10); a(f"s_lshl_b32 s{T2}, s{T0}, 10\nv_lshl_add_u32 v{vLM+ph}, v{LANE}, 4, s{T2}")
        if ph < 3: vexpr(a, vMld + ph, MFR, [(sX, 16384), (T2, 1), RM_O])
    for ph in range(12):
        rot(ph, 12); a(f"s_lshl_b32 s{T0}, s{T0}, 10\ns_add_u32 s{T0}, s{T0}, {LO}\nv_lshl_add_u32 v{vLO+ph}, v{LANE}, 4, s{T0}")
    LIN = [(0, 6, 16)]
    vexpr(a, vOld, LIN, [(sGF, 12288), (S_W, 3072), RO_O])
    vexpr(a, vZw, [(0, 4, ZP), (4, 2, 8)], [(S_W, 16 * ZP), LZ])
    vexpr(a, vVw, [(0, 6, 4)], [(S_W, 256), LV])
    a(f"s_mov_b32 s{sPOL}, s{S_POL}")
    vexpr(a, vPst, [(0, 4, 16), (4, 1, 8), (5, 1, 4)], [(sJ, 16384), (sPOL, 8192), (S_W, 2048), (sGF, 256)])
    vexpr(a, vVMst, [(0, 6, 4)], [(sH, 3072), (sT, 1024), (S_W, 256), VM])
    for i in range(4): a(f"v_mov_b32 v{vNEG+i}, -1")
    for i in range(16): a(f"v_mov_b32 v{vQ+i}, 0")
    a(f"s_mov_b32 s{sC}, {hex(f2u(192 ** -0.5 * math.log2(math.e)))}")
    saddr(a, sI0, [RI]); saddr(a, sP0, [RPF])
    a(f"s_mov_b32 s{sS}, 0\ns_add_u32 s{sI1}, s{sI0}, {RI_STRIDE}\ns_add_u32 s{sI2}, s{sI1}, {RI_STRIDE}\ns_add_u32 s{sI3}, s{sI2}, {RI_STRIDE}")
    a(f"s_mov_b32 s{sKV}, 0\ns_mov_b32 s{sKM}, 0\ns_mov_b32 s{S_TO}, {TIMEOUT}\nv_mov_b32 v{vSEQ}, 1\ns_mov_b32 s{sSEQ}, 1")
    fo = HINT; fm = fo + 0x8000; fx = XHINT
    def xline(xreg):
        return [(xreg, 16384), (sPOL, 8192), (sGL, 12 * 256), (sJ, 256), fx]
    saddr(a, T0, xline(sX)[1:]); a(f"s_add_u32 s{sXB}, s{S_PTR}, s{T0}\ns_addc_u32 s{sXB+1}, s{S_PTR+1}, 0")
    for k in range(3): a(f"s_add_u32 s{sXO+k}, s{sX}, {k+1}\ns_and_b32 s{sXO+k}, s{sXO+k}, 3\ns_lshl_b32 s{sXO+k}, s{sXO+k}, 14")
    if stamps:
        a(f"v_cmp_gt_u32 vcc, 8, v{LANE}\nv_mov_b32 v{vSTI}, 32\ns_nop 0\nv_cndmask_b32 v{vSTI}, 0, v{vSTI}, vcc")
        saddr(a, T0, [(S_W, 2048), LSTAMP]); a(f"v_lshl_add_u32 v{vSTD}, v{LANE}, 2, s{T0}\nv_mov_b32 v{vSTP}, {LSTAMP + 8192}\nv_cndmask_b32 v{vSTP}, v{vSTP}, v{vSTD}, vcc")
        a("s_mov_b32 s92, 0\ns_mov_b32 s93, 0\ns_mov_b32 s94, 0\ns_mov_b32 s95, 0")
    FAIL = c.lab("fail"); DONE = c.lab("done")
    def smf(d, fr, w): a(f"v_smfmac_f32_16x16x64_bf16 {vr(d,4)}, {vr(vFR+4*fr,4)}, {w}, v{vIDX}")
    def timeout(L): a(f"s_sub_u32 s{S_TO}, s{S_TO}, 1\ns_cmp_lg_u32 s{S_TO}, 0\ns_cbranch_scc1 {L}\ns_branch {FAIL}")
    def br_bad(R):
        if nocheck:
            n = c.lab("nc"); a(f"s_cbranch_vccnz {n}\n{n}:")
        else: a(f"s_cbranch_vccnz {R}")
    def acc_max(i, r):
        if i == 0: a(f"v_max3_u32 v{vCK}, v{r}, v{r+1}, v{r+2}\nv_mov_b32 v{vCK+1}, v{r+3}")
        else: a(f"v_max3_u32 v{vCK}, v{vCK}, v{r}, v{r+1}\nv_max3_u32 v{vCK+1}, v{vCK+1}, v{r+2}, v{r+3}")
    cold = []
    def gather(loads, ldsaddr, early, accs, cnt):
        L = c.lab("g"); R = c.lab("r")
        a(f"{L}:")
        for i, l in enumerate(loads):
            a(l)
            if i < 2: nop(a, opt.get("lgap", 0))
        for i in range(3):
            a(f"s_waitcnt vmcnt({2-i})")
            a(f"ds_write_b128 v{ldsaddr+i}, {vr(vFR+4*i,4)}")
            if opt.get("lgap", 0):
                acc_max(i, vFR + 4 * i)
                if i < 2: early(i)
        if not opt.get("lgap", 0):
            for i in range(3):
                if i < 2: early(i)
                acc_max(i, vFR + 4 * i)
        a(f"v_max_u32 v{vCK}, v{vCK}, v{vCK+1}")
        a(f"v_cmp_eq_u32 vcc, -1, v{vCK}")
        br_bad(R)
        def rt():
            a(f"{R}:")
            if stamps: a(f"s_add_u32 s{cnt}, s{cnt}, 1")
            a("s_nop 7")
            for r in accs: a(f"v_mov_b32 v{r}, 0")
            timeout(L)
        cold.append(rt)
    def spin(vaddr, mask, vt):
        L = c.lab("sp"); D = c.lab("sd")
        a(f"s_mov_b64 exec, {mask}")
        a(f"{L}:")
        for k in range(6):
            a(f"buffer_load_dword v{vt}, v{vaddr}, {WS}, 0 offen sc1")
            a(f"v_cmp_gt_u32 vcc, v{vSEQ}, v{vt}\ns_cbranch_vccz {D}")
        a("s_waitcnt vmcnt(40)")
        timeout(L)
        a(f"{D}:\ns_mov_b64 exec, -1")
    LW = [c.lab(f"w{w}") for w in range(4)]
    for w in range(1, 4): a(f"s_cmp_eq_u32 s{S_W}, {w}\ns_cbranch_scc1 {LW[w]}")
    vS = vT + 4
    for w in range(4):
        a(f"{LW[w]}:")
        vZ = vVM
        vKVld, vSst, vSw, vZr, vFL, vHint = vA, vA + 1, vA + 2, vA + 3, vA + 4, vA + 10
        a(f"v_mov_b32 v{vHint}, 0")
        SMM = [(0, 3, 32), (4, 1, 16), (5, 1, 8), (3, 1, 4)]
        nkv = [0, 2, 2, 4][w]
        if w in (1, 2):
            vexpr(a, vKVld, LIN, [(sH, 12288), (sT, 2048), KF + (w - 1) * 6144])
            vexpr(a, vSst, [(4, 2, 256), (0, 3, 16)], [(sH, 4096), (sT, 1024), RS_O + (w - 1) * 128]); keepbit(a, vSst, 3, 0)
            vexpr(a, vSw, [(4, 2, 256), (0, 3, 16), (3, 1, 2048)], [LS + (w - 1) * 128])
        if w == 0:
            vexpr(a, vSst, [(4, 1, 16), (0, 3, 32)], [(sH, 4096), (sT, 256), RS_O + 3072]); keepbit(a, vSst, 3, 0); keepbit(a, vSst, 5, 1)
            vexpr(a, vSw, [(4, 1, 16), (0, 3, 32), (3, 1, 2048), (5, 1, 256)], [LS + 1024])
        if w == 2:
            vKMst = vA + 5; vFX2 = vA + 6; vSc2 = vA + 7; vPRG = vA + 8
            vexpr(a, vSc2, [(0, 6, 4)], [(sH, 4096), (sT, 256), RS_O + 3072])
            vexpr(a, vPRG, [(0, 6, 4)], [(sH, 128), (sT, 4), F_CHAIN]); keep(a, vPRG, f"v_cmp_gt_u32 vcc, 1, v{LANE}")
            vexpr(a, vFX2, [(0, 6, 4)], xline(sX)); keep(a, vFX2, f"v_cmp_gt_u32 vcc, 1, v{LANE}")
            vexpr(a, vKMst, [(0, 3, 64), (4, 2, 16)], [(sH, 3072), (sT, 1024), KM]); keepbit(a, vKMst, 3, 1)
        if w < 3: vexpr(a, vZr, [(4, 2, 8 * ZP), (2, 2, ZP), (0, 2, 8)], [LZ])
        if w == 0:
            vPld, vMst, vFMst = vA + 5, vA + 6, vA + 7
            vexpr(a, vPld, LIN, [(sJH, 16384), (sPOL, 8192), (sGL, 4096)])
            vexpr(a, vFL, [(0, 6, 4)], [(sG, 12 * 128), (sJ, 128), fo])
            a(f"s_and_b32 s{T1}, s{S_RANK}, 31\ns_lshl_b32 s{T1}, 1, s{T1}\ns_andn2_b32 s{sFM}, 0xffffff, s{T1}\ns_mov_b32 s{sFM+1}, 0")
            a(f"s_mov_b32 s{sXV}, 0\ns_mov_b32 s{sXV+1}, 0\ns_mov_b32 s{sXV+2}, 0")
            a(f"s_mul_i32 s{T1}, s{sGL}, 10\ns_add_u32 s{T1}, s{T1}, s{sJ}\ns_cmp_ge_u32 s{sJ}, 10\ns_cselect_b32 s{T1}, 31, s{T1}")
            a(f"s_and_b32 s{T2}, s{S_RANK}, 31\ns_add_u32 s{T2}, s{T2}, 1\nv_add_u32 v{vFMst}, s{T2}, v{LANE}\nv_subrev_u32 v1, 24, v{vFMst}\nv_min_u32 v{vFMst}, v{vFMst}, v1\nv_lshlrev_b32 v{vFMst}, 7, v{vFMst}")
            saddr(a, T0, [(sX, 24 * 128), (T1, 4), fm]); a(f"v_add_u32 v{vFMst}, s{T0}, v{vFMst}")
            keep(a, vFMst, f"v_cmp_gt_u32 vcc, 23, v{LANE}")
            for r in range(4):
                a(f"v_bfe_u32 v1, v{LANE}, 1, 2\nv_cmp_eq_u32 vcc, {r}, v1\nv_and_b32 v1, 1, v{LANE}\nv_lshlrev_b32 v1, 4, v1\nv_mov_b32 v{vT}, 0x3f80\nv_lshlrev_b32 v1, v1, v{vT}\nv_cndmask_b32 v{vID+r}, 0, v1, vcc")
        if w in (0, 1):
            vMst = vA + 6
            vexpr(a, vMst, MFR, [(sX, 16384), (sJS, 1024), RM_O])
            a(f"v_mov_b32 v1, {OOB}\nv_cndmask_b32 v{vMst}, v{vMst}, v1, s[{sOWN}:{sOWN+1}]")
        if w == 1:
            vexpr(a, vFL, [(0, 6, 4)], [(sG, 12 * 128), (sJ, 128), fm])
            a(f"s_mul_i32 s{T1}, s{sGL}, 10\ns_add_u32 s{T1}, s{T1}, s{sJ}\ns_cmp_ge_u32 s{sJ}, 10\ns_cselect_b32 s{T1}, 31, s{T1}\ns_lshl_b32 s{T1}, 1, s{T1}\ns_andn2_b32 s{sFM}, 0xfffff, s{T1}\ns_mov_b32 s{sFM+1}, 0")
            vSclr = vA + 5
            vexpr(a, vSclr, LIN, [(sH, 4096), (sT, 1024), RS_O])
            a(f"s_mov_b32 s{sXV}, 0\ns_mov_b32 s{sXV+1}, 0\ns_mov_b32 s{sXV+2}, 0\ns_mov_b32 s{sXV+3}, 0")
        if w == 3:
            vSx0, vSx1, vSm0, vSm1, vSxL, vSmL, vVr, vOst, vFX = vA + 1, vA + 2, vA + 3, vA + 5, vA + 6, vA + 7, vA + 8, vA + 9, vID
            vexpr(a, vKVld, LIN, [(sH, 12288), (sT, 4096), VT])
            for k, (vx, vm_) in enumerate(((vSx0, vSm0), (vSx1, vSm1))):
                a(f"s_add_u32 s{T2}, s{sT}, {k+1}"); smod(a, T2, 3)
                vexpr(a, vx, LIN, [(sH, 4096), (T2, 1024), RS_O])
                vexpr(a, vm_, SMM, [(sH, 4096), (T2, 256), RS_O + 3072])
            vexpr(a, vSxL, LIN, [LS]); vexpr(a, vSmL, SMM, [LS + 1280]); vexpr(a, vVr, [(0, 6, 4)], [LV])
            vexpr(a, vOst, LIN, [(sH, 3072), (sT, 1024), RO_O])
            a(f"s_and_b32 s{T1}, s{S_RANK}, 31\ns_add_u32 s{T2}, s{T1}, 1\nv_add_u32 v{vFL}, s{T2}, v{LANE}\nv_subrev_u32 v1, 24, v{vFL}\nv_min_u32 v{vFL}, v{vFL}, v1\nv_lshlrev_b32 v{vFL}, 7, v{vFL}")
            saddr(a, T0, [(sX, 24 * 128), (T1, 4), fo]); a(f"v_add_u32 v{vFL}, s{T0}, v{vFL}")
            keep(a, vFL, f"v_cmp_gt_u32 vcc, 23, v{LANE}")
            for i in range(4): a(f"v_mov_b32 v{vVM+2*i+1}, 0")
            a(f"v_mov_b32 v{vG+1}, 0")
        kvl = [f"buffer_load_dwordx4 {vr(vKV+4*i,4)}, v{vKVld}, {WS}, s{sKV} offen offset:{1024*i} sc1" for i in range(nkv)]
        if opt.get("nokv"): kvl = []
        sRDY, sFB = 56, 100
        def kv_ready():
            if not (flags and nkv): return
            R = c.lab("kvw"); B = c.lab("kvb")
            a(f"s_cmp_le_u32 s{sRDY}, s{sS}\ns_cbranch_scc1 {R}\n{B}:")
            def slow():
                a(f"{R}:\ns_load_dwordx4 s[{sXV}:{sXV+3}], s[{sFB}:{sFB+1}], 0 glc\ns_waitcnt lgkmcnt(0)\ns_min_u32 s{sRDY}, s{sXV}, s{sXV+1}\ns_min_u32 s{sRDY}, s{sRDY}, s{sXV+2}\ns_cmp_gt_u32 s{sRDY}, s{sS}\ns_cbranch_scc1 {B}")
                timeout(R)
            cold.append(slow)
        saddr(a, T0, [(sH, 128), F_PROJ])
        a(f"s_add_u32 s{sFB}, s{S_PTR}, s{T0}\ns_addc_u32 s{sFB+1}, s{S_PTR+1}, 0\ns_mov_b32 s{sRDY}, 0")
        if w == 0:
            vexpr(a, vT, [(0, 3, 1280), (4, 2, 8)], [(sJH, 128), (sGL, 64)])
            a(f"buffer_load_dwordx2 {vr(vFR,2)}, v{vT}, s[{S_MEM}:{S_MEM+3}], 0 offen\nbuffer_load_dwordx2 {vr(vFR+2,2)}, v{vT}, s[{S_MEM}:{S_MEM+3}], 0 offen offset:32\ns_waitcnt vmcnt(0)")
            a(f"buffer_store_dwordx4 {vr(vFR,4)}, v{vMst}, {WS}, s{sI0} offen {isc}")
        kv_ready()
        if w in (1, 2):
            for l in kvl: a(l)
        rtstamp(a, 3); cystamp(a, 5)
        LOOP = c.lab("loop")
        a(f"s_branch {LOOP}\n.p2align 6\n{LOOP}:")
        nop(a, opt.get("preM", 0))
        ml = [f"buffer_load_dwordx4 {vr(vFR+4*i,4)}, v{vMld+i}, {WS}, s{sI0} offen sc1" for i in range(3)]
        if w == 0: ml[0] = f"s_mov_b64 exec, s[{sOWN}:{sOWN+1}]\n{ml[0]}\ns_mov_b64 exec, -1"
        gather(ml, vLM, lambda i: (smf(vQ, i, WQ(i)), smf(vK, i, WK(i))), range(vQ, vQ + 8), 92)
        stamp(0)
        a("s_waitcnt lgkmcnt(0)\ns_barrier")
        RA = opt.get("ra", 3)
        rd = lambda ph: a(f"ds_read_b128 {vr(vFR+4*ph,4)}, v{vLM+ph}")
        for ph in range(3, 3 + RA): rd(ph)
        smf(vQ, 2, WQ(2)); smf(vK, 2, WK(2))
        side = list(kvl) if w == 3 else []
        if w == 2 and flags: side = [f"v_add_u32 v{vT+2}, -1, v{vSEQ}", f"buffer_store_dword v{vT+2}, v{vPRG}, {WS}, 0 offen {isc}"]
        for ph in range(3, 10):
            a(f"s_waitcnt lgkmcnt({min(RA - 1, 9 - ph)})")
            smf(vQ, ph, WQ(ph))
            if ph + RA < 10: rd(ph + RA)
            smf(vK, ph, WK(ph))
            if side: a(side.pop(0))
        smf(vV, 0, WV(0))
        nop(a, 7)
        for r in range(4): a(f"v_permlane32_swap_b32 v{vQ+r}, v{vK+r}")
        for r in range(4): a(f"v_add_f32 v{vQ+r}, v{vQ+r}, v{vK+r}")
        a(f"v_cvt_pk_bf16_f32 v{vT}, v{vQ}, v{vQ+1}\nv_cvt_pk_bf16_f32 v{vT+1}, v{vQ+2}, v{vQ+3}")
        a(f"ds_write_b64 v{vZw}, {vr(vT,2)}")
        for ph in range(1, 4): smf(vV, ph, WV(ph))
        a("s_waitcnt lgkmcnt(0)\ns_barrier")
        stamp(1)
        def vtail(pre=8):
            nop(a, pre)
            a(f"v_permlane32_swap_b32 v{vV}, v{vV+2}\nv_permlane32_swap_b32 v{vV+1}, v{vV+3}")
            a(f"v_add_f32 v{vV}, v{vV}, v{vV+2}\nv_add_f32 v{vV+1}, v{vV+1}, v{vV+3}")
            a(f"v_cvt_pk_bf16_f32 v{vT+8}, v{vV}, v{vV+1}")
            if w >= 2: a(f"v_cvt_pk_bf16_f32 v{vT+9}, v{vV+1}, v{vV}")
            a(f"ds_write_b32 v{vVw}, v{vT+(9 if w >= 2 else 8)}")
        def kmvm(w=w):
            a(f"buffer_store_dword v{vT+8}, v{vVMst}, {WS}, s{sKM} offen {isc}")
            if w == 2:
                for u in range(2): a(f"buffer_store_dwordx4 {vr(vZ+4*u,4)}, v{vKMst}, {WS}, s{sKM} offen offset:{512*u} {isc}")
        LAST = c.lab("last")
        def last(LAST=LAST, kmvm=kmvm, w=w):
            a(f"{LAST}:"); kmvm(); a("s_waitcnt vmcnt(0)\ns_barrier")
            if w == 2 and flags: a(f"buffer_store_dword v{vSEQ}, v{vPRG}, {WS}, 0 offen {isc}")
            a(f"s_branch {DONE}")
        cold.append(last)
        if w < 3:
            for u in range(2):
                for q in range(2): a(f"ds_read_b64_tr_b16 {vr(vZ+4*u+2*q,2)}, v{vZr} offset:{(u*32+q*4)*ZP}")
            for ph in range(4, 6): smf(vV, ph, WV(ph))
            A0, A1 = (vKV, vKV + 4) if w > 0 else (vZ, vZ + 4)
            a("s_waitcnt lgkmcnt(2)")
            a(f"v_mfma_f32_16x16x32_bf16 {vr(vS,4)}, {vr(A0,4)}, {vr(vZ,4)}, 0")
            a("s_waitcnt lgkmcnt(0)")
            a(f"v_mfma_f32_16x16x32_bf16 {vr(vS,4)}, {vr(A1,4)}, {vr(vZ+4,4)}, {vr(vS,4)}")
            nop(a, 8)
            a(f"buffer_store_dwordx4 {vr(vS,4)}, v{vSst}, {WS}, s{sI0} offen {isc}")
            stamp(2)
            a(f"ds_write_b128 v{vSw}, {vr(vS,4)}")
            for ph in range(6, 10): smf(vV, ph, WV(ph))
            a("s_waitcnt lgkmcnt(0)\ns_barrier")
            for i in range(8): a(f"v_mov_b32 v{vQ+i}, 0")
            vtail(0)
            a(f"s_cmp_eq_u32 s{sS}, {NSEG-1}\ns_cbranch_scc1 {LAST}")
            a("s_waitcnt lgkmcnt(0)\ns_barrier")
            for i in range(4): a(f"v_mov_b32 v{vV+i}, 0")
            if w == 0 and oflag is not None:
                nop(a, opt.get("ospin0", 0)); spin(vFL, f"s[{sFM}:{sFM+1}]", vHint)
            if w == 2 and xflag is not None:
                nop(a, xflag); a(f"buffer_store_dword v{vSEQ}, v{vFX2}, {WS}, 0 offen sc1")
            if w == 1 and xflag is not None:
                L = c.lab("xs"); D = c.lab("xd")
                nop(a, opt.get("xspin0", 0))
                a(f"{L}:")
                for k in range(3):
                    a(f"s_load_dword s{sXV+k}, s[{sXB}:{sXB+1}], s{sXO+k} glc")
                    a(f"s_min_u32 s{T0}, s{sXV}, s{sXV+1}\ns_min_u32 s{T0}, s{T0}, s{sXV+2}\ns_cmp_ge_u32 s{T0}, s{sSEQ}\ns_cbranch_scc1 {D}")
                a("s_waitcnt lgkmcnt(12)")
                timeout(L); a(f"{D}:")
        else:
            for ph in range(4, 10): smf(vV, ph, WV(ph))
            X = vFR; MMr = vFR + 12
            def sload():
                a(f"buffer_load_dwordx4 {vr(X,4)}, v{vSx0}, {WS}, s{sI0} offen sc1\nbuffer_load_dwordx4 {vr(X+4,4)}, v{vSx1}, {WS}, s{sI0} offen sc1")
                a(f"buffer_load_dword v{MMr}, v{vSm0}, {WS}, s{sI0} offen sc1\nbuffer_load_dword v{MMr+1}, v{vSm1}, {WS}, s{sI0} offen sc1")
            def hint_at(k):
                if oflag == k: a(f"buffer_store_dword v{vSEQ}, v{vFL}, {WS}, 0 offen {isc}")
                return int(oflag == k)
            vtail()
            a(f"s_cmp_eq_u32 s{sS}, {NSEG-1}\ns_barrier\ns_cbranch_scc1 {LAST}")
            nop(a, opt.get("preS", 0))
            depth = opt.get("sdepth", 2)
            L = c.lab("poll"); R = c.lab("sr")
            sload()
            a(f"ds_read_b128 {vr(X+8,4)}, v{vSxL}\nds_read_b32 v{MMr+2}, v{vSmL}")
            for i in range(depth - 1): nop(a, opt.get("sgap", 8)); sload()
            a("s_waitcnt lgkmcnt(0)\ns_barrier")
            for i in range(4): a(f"ds_read_b32 v{vVM+2*i}, v{vVr} offset:{256*i}")
            a(f"s_waitcnt vmcnt({4*depth})")
            for t_ in (2, 3): a(f"v_swap_b32 v{vKV+4*t_}, v{vKV+4*t_+2}\nv_swap_b32 v{vKV+4*t_+1}, v{vKV+4*t_+3}")
            a(f"{L}:\ns_waitcnt vmcnt({4*(depth-1)})")
            s0 = vFR + 16; p0 = vFR + 24; Fq = vFR + 32; m = vT; t = vT + 1; m2 = vT + 2; t2 = vT + 3
            a(f"v_max3_u32 v{vCK}, v{X}, v{X+1}, v{X+2}\nv_max3_u32 v{vCK+1}, v{X+3}, v{X+4}, v{X+5}")
            a(f"v_max3_u32 v{vCK}, v{vCK}, v{X+6}, v{X+7}\nv_max3_u32 v{vCK+1}, v{vCK+1}, v{MMr}, v{MMr+1}")
            a(f"v_pk_add_f32 {vr(s0,2)}, {vr(X+8,2)}, {vr(X,2)}\nv_max_u32 v{vCK}, v{vCK}, v{vCK+1}")
            a(f"v_pk_add_f32 {vr(s0+2,2)}, {vr(X+10,2)}, {vr(X+2,2)}\nv_cmp_eq_u32 vcc, -1, v{vCK}\nv_add_f32 v{s0+4}, v{MMr+2}, v{MMr}")
            a(f"v_pk_add_f32 {vr(s0,2)}, {vr(s0,2)}, {vr(X+4,2)}\nv_pk_add_f32 {vr(s0+2,2)}, {vr(s0+2,2)}, {vr(X+6,2)}\nv_add_f32 v{s0+4}, v{s0+4}, v{MMr+1}")
            br_bad(R)
            def srt(L=L, R=R, sload=sload):
                a(f"{R}:"); sload()
                if stamps: a("s_add_u32 s93, s93, 1")
                timeout(L)
            cold.append(srt)
            stamp(2)
            ROR = "row_ror:8 row_mask:0xf bank_mask:0xf"
            a(f"v_max3_f32 v{m}, v{s0}, v{s0+1}, v{s0+4}\nv_max3_f32 v{m}, v{m}, v{s0+2}, v{s0+3}")
            nop(a, 2 - hint_at(0))
            a(f"v_max_f32_dpp v{m2}, v{m}, v{m} {ROR}\nv_max_f32_dpp v{t2}, v{m}, v{m} {ROR}\ns_nop 1")
            a(f"v_permlane16_swap_b32 v{t2}, v{m2}\nv_max_f32 v{m}, v{m2}, v{t2}\nv_max_f32 v{t}, v{m2}, v{t2}")
            nop(a, 2 - hint_at(1))
            a(f"v_permlane32_swap_b32 v{t}, v{m}\nv_max_f32 v{m}, v{m}, v{t}")
            a(f"v_mul_f32 v{m}, s{sC}, v{m}")
            for r in (0, 1, 2, 3, 4): a(f"v_fma_f32 v{p0+r}, v{s0+r}, s{sC}, -v{m}")
            for r in (0, 1, 2): a(f"v_exp_f32 v{p0+r}, v{p0+r}")
            a(f"v_cvt_pk_bf16_f32 v{Fq}, v{p0}, v{p0+1}")
            a(f"v_exp_f32 v{p0+3}, v{p0+3}\nv_exp_f32 v{p0+4}, v{p0+4}")
            a(f"v_cvt_pk_bf16_f32 v{Fq+1}, v{p0+2}, v{p0+3}")
            a(f"v_mov_b32_dpp v{Fq+2}, v{Fq} {ROR}\nv_mov_b32_dpp v{t2}, v{p0+4} {ROR}\nv_mov_b32_dpp v{Fq+3}, v{Fq+1} {ROR}")
            a(f"v_add_f32 v{m}, v{p0}, v{p0+1}\nv_cvt_pk_bf16_f32 v{vG}, v{p0+4}, v{t2}")
            Tt = [vFR + 36, vFR + 40, vFR + 44, vQ]
            def pvx(i): a(f"v_mfma_f32_16x16x32_bf16 {vr(Tt[i],4)}, {vr(vKV+4*i,4)}, {vr(Fq,4)}, 0")
            def pvm(i): a(f"v_mfma_f32_16x16x16_bf16 {vr(Tt[i],4)}, {vr(vVM+2*i,2)}, {vr(vG,2)}, {vr(Tt[i],4)}")
            pvx(0)
            a(f"v_add_f32 v{t}, v{p0+2}, v{p0+3}\nv_add_f32 v{m}, v{m}, v{p0+4}")
            pvx(2)
            a(f"v_add_f32 v{m}, v{m}, v{t}")
            hint_at(2); a("s_waitcnt lgkmcnt(0)")
            pvm(0)
            a(f"v_add_f32_dpp v{m2}, v{m}, v{m} {ROR}\nv_add_f32_dpp v{t2}, v{m}, v{m} {ROR}")
            pvm(2)
            if not hint_at(3): a("s_nop 0")
            a(f"v_permlane16_swap_b32 v{t2}, v{m2}")
            pvx(1)
            a(f"v_add_f32 v{m}, v{m2}, v{t2}\nv_add_f32 v{t}, v{m2}, v{t2}")
            pvx(3)
            a(f"s_nop 0\nv_permlane32_swap_b32 v{t}, v{m}")
            pvm(1)
            a(f"v_add_f32 v{m}, v{m}, v{t}\nv_rcp_f32 v{m}, v{m}")
            pvm(3)
            U = vFR + 16
            for r in range(4): a(f"v_cndmask_b32 v{U+r}, v{Tt[0]+r}, v{Tt[2]+r}, s[{sB}:{sB+1}]")
            for r in range(4): a(f"v_mul_f32 v{U+r}, v{U+r}, v{m}")
            for r in range(4): a(f"v_cndmask_b32 v{U+4+r}, v{Tt[1]+r}, v{Tt[3]+r}, s[{sB}:{sB+1}]")
            for r in range(4): a(f"v_mul_f32 v{U+4+r}, v{U+4+r}, v{m}")
            for r in range(4): a(f"v_cvt_pk_bf16_f32 v{U+8+r}, v{U+2*r}, v{U+2*r+1}")
            a(f"buffer_store_dwordx4 {vr(U+8,4)}, v{vOst}, {WS}, s{sI0} offen {isc}")
        a("s_barrier")
        stamp(3)
        nop(a, opt.get("preO", 0))
        gather([f"buffer_load_dwordx4 {vr(vFR+4*i,4)}, v{vOld}, {WS}, s{sI0} offen offset:{1024*i} sc1" for i in range(3)], vLO,
               lambda i: smf(vF, i, WO(i)), range(vF, vF + 4), 94)
        stamp(4)
        a("s_waitcnt lgkmcnt(0)\ns_barrier")
        RF = opt.get("rf", 4)
        rd = lambda ph: a(f"ds_read_b128 {vr(vFR+4*ph,4)}, v{vLO+ph}")
        for ph in range(3, 3 + RF): rd(ph)
        pflag = opt.get("pflag")
        if w == 2 and pflag == 2: a(f"buffer_store_dword v{vSEQ}, v{vFX2}, {WS}, 0 offen sc1")
        smf(vF, 2, WO(2))
        for ph in range(3, 12):
            a(f"s_waitcnt lgkmcnt({min(RF - 1, 11 - ph)})")
            smf(vF, ph, WO(ph))
            if ph + RF < 12: rd(ph + RF)
            if w == 2 and pflag == ph: a(f"buffer_store_dword v{vSEQ}, v{vFX2}, {WS}, 0 offen sc1")
        def xload():
            for k in range(3): a(f"s_load_dword s{sXV+k}, s[{sXB}:{sXB+1}], s{sXO+k} glc")
        if w == 0 and pflag is not None: xload()
        a(f"s_mov_b32 s{sPc}, s{sP0}\ns_add_u32 s{sS}, s{sS}, 1\ns_add_u32 s{sP0}, s{sP0}, {RP_STRIDE}\ns_and_b32 s{T0}, s{sS}, 7\ns_cmp_eq_u32 s{T0}, 0\ns_cselect_b32 s{sFLIP}, 0x2000, 0")
        a(f"s_add_u32 s{sKV}, s{sKV}, {32*12288}\ns_mov_b32 s{S_TO}, {TIMEOUT}")
        a(f"v_permlane32_swap_b32 v{vF}, v{vF+2}\nv_permlane32_swap_b32 v{vF+1}, v{vF+3}")
        a(f"v_add_f32 v{vF}, v{vF}, v{vF+2}\nv_add_f32 v{vF+1}, v{vF+1}, v{vF+3}")
        a(f"v_cvt_pk_bf16_f32 v{vT}, v{vF}, v{vF+1}")
        a(f"buffer_store_dword v{vT}, v{vPst}, {WS}, s{sPc} offen sc1")
        stamp(5)
        for i in range(4): a(f"v_mov_b32 v{vF+i}, 0")
        a(f"v_xor_b32 v{vPst}, s{sFLIP}, v{vPst}")
        kv_ready()
        if w in (1, 2):
            for l in kvl: a(l)
        if w == 3:
            for i in range(12): a(f"v_mov_b32 v{vQ+i}, 0")
        def dump():
            nop(a, 16)
            for i in range(8): a(f"v_writelane_b32 v{vSTD}, s{ST+2*i}, {i}")
            a(f"ds_write_b32 v{vSTP}, v{vSTD}\nv_add_u32 v{vSTP}, v{vSTP}, v{vSTI}")
        if stamps and w != 0: dump()
        if w != 0: nop(a, opt.get("preSide", 0))
        kmvm()
        if w == 1:
            a(f"buffer_store_dwordx4 {vr(vNEG,4)}, v{vSclr}, {WS}, s{sI2} offen {isc}")
            a(f"buffer_store_dwordx4 {vr(vNEG,4)}, v{vMst}, {WS}, s{sI3} offen {isc}")
        if w == 2: a(f"buffer_store_dword v{vNEG}, v{vSc2}, {WS}, s{sI2} offen {isc}")
        if w == 3: a(f"buffer_store_dwordx4 {vr(vNEG,4)}, v{vOst}, {WS}, s{sI2} offen {isc}")
        a(f"s_mov_b32 s{T0}, s{sI0}\ns_mov_b32 s{sI0}, s{sI1}\ns_mov_b32 s{sI1}, s{sI2}\ns_mov_b32 s{sI2}, s{sI3}\ns_mov_b32 s{sI3}, s{T0}")
        a(f"s_add_u32 s{sKM}, s{sKM}, {32*3072}")
        if w == 0:
            if pflag is not None:
                L = c.lab("xs"); D = c.lab("xd")
                a(f"{L}:")
                xload()
                for k in range(opt.get("xrep", 3)):
                    a(f"s_min_u32 s{T0}, s{sXV}, s{sXV+1}\ns_min_u32 s{T0}, s{T0}, s{sXV+2}\ns_cmp_ge_u32 s{T0}, s{sSEQ}\ns_cbranch_scc1 {D}")
                a("s_waitcnt lgkmcnt(12)")
                timeout(L); a(f"{D}:")
                if opt.get("st7x"): stamp(7)
            if opt.get("prePack", 0): a("s_waitcnt vmcnt(0)")
            nop(a, opt.get("preP", 0))
            L = c.lab("p"); R = c.lab("pr")
            def pload():
                for i in range(4): a(f"buffer_load_dwordx4 {vr(vFR+16+4*i,4)}, v{vPld}, {WS}, s{sPc} offen offset:{1024*i} sc1")
            pload()
            if stamps: dump()
            a(f"{L}:")
            fl = 0
            hint = f"buffer_store_dword v{vSEQ}, v{vFMst}, {WS}, 0 offen {isc}"
            if mflag == "ack": a("s_waitcnt vmcnt(4)"); a(hint); fl = 1
            elif mflag is not None and mflag >= 10: nop(a, mflag); a(hint); fl = 1
            for i in range(4):
                a(f"s_waitcnt vmcnt({3-i+fl})")
                if mflag == i: a(hint); fl = 1
                d = vFR + 32 + 4 * (i >> 1)
                a(f"v_mfma_f32_16x16x32_bf16 {vr(d,4)}, {vr(vFR+16+4*i,4)}, {vr(vID,4)}, {'0' if i % 2 == 0 else vr(d,4)}")
                acc_max(i, vFR + 16 + 4 * i)
            a(f"v_max_u32 v{vCK}, v{vCK}, v{vCK+1}\nv_cmp_eq_u32 vcc, -1, v{vCK}")
            for r in range(2): a(f"v_cvt_pk_bf16_f32 v{vFR+r}, v{vFR+32+2*r}, v{vFR+33+2*r}")
            a("s_nop 0")
            br_bad(R)
            if mflag == 4: a(hint)
            for r in range(2, 4): a(f"v_cvt_pk_bf16_f32 v{vFR+r}, v{vFR+32+2*r}, v{vFR+33+2*r}")
            a(f"buffer_store_dwordx4 {vr(vFR,4)}, v{vMst}, {WS}, s{sI0} offen {isc}")
            stamp(6)
            def prt(L=L, R=R, pload=pload):
                a(f"{R}:"); pload()
                if stamps: a("s_add_u32 s95, s95, 1")
                timeout(L)
            cold.append(prt)
        if w == 1 and mflag is not None:
            nop(a, opt.get("mspin0", 0))
            spin(vFL, f"s[{sFM}:{sFM+1}]", vHint)
        a("s_barrier")
        if not (opt.get("st7x") and w == 0): stamp(7)
        a(f"v_add_u32 v{vSEQ}, 1, v{vSEQ}\ns_add_u32 s{sSEQ}, s{sSEQ}, 1")
        if w == 0: a(f"v_xor_b32 v{vPld}, s{sFLIP}, v{vPld}")
        a(f"s_branch {LOOP}")
        for f in cold: f()
        cold.clear()
    a(f"{FAIL}:")
    a(f"s_mov_b64 exec, 1\nv_mov_b32 v1, {ERR}\nv_mov_b32 v{vT}, 1\nbuffer_atomic_add v{vT}, v1, {WS}, 0 offen\ns_mov_b64 exec, -1")
    a(f"{DONE}:")
    rtstamp(a, 4); cystamp(a, 6)
    if stamps:
        vexpr(a, vT, LIN, [(S_W, 2048), LSTAMP])
        a(f"ds_read_b128 {vr(vFR,4)}, v{vT}\nds_read_b128 {vr(vFR+4,4)}, v{vT} offset:1024")
        vexpr(a, vT, LIN, [(S_RANK, 4 * 4096), (S_W, 4096), (S_L, 0x400000), STAMP])
        a(f"s_waitcnt lgkmcnt(0)\nbuffer_store_dwordx4 {vr(vFR,4)}, v{vT}, {WS}, 0 offen\nbuffer_store_dwordx4 {vr(vFR+4,4)}, v{vT}, {WS}, 0 offen offset:1024")
        a(f"s_mov_b64 exec, 1")
        for i in range(4): a(f"v_mov_b32 v{vFR+8+i}, s{92+i}")
        a(f"buffer_store_dwordx4 {vr(vFR+8,4)}, v{vT}, {WS}, 0 offen offset:4080")
    a("s_waitcnt vmcnt(0) lgkmcnt(0)")
    a("s_endpgm")
```

```python
WS_SIZE = 268435456
FLG   = 0x2000
F_PROJ, F_CHAIN, F_ATT, F_O, F_FIN = (FLG + k * 4096 for k in range(5))
HINT  = 0x20000
CTL_END = 0x40000
ERR   = 0x40000
MBX   = 0x48000
RI    = 0x400000
RI_STRIDE = 0x50000
RM_O, RS_O, RO_O = 0, 0x10000, 0x30000
RING_END = RI + 4 * RI_STRIDE
HF    = 0x700000
X1    = 0xA00000
X2    = 0xD00000
H2    = 0x1000000
UU    = 0x1300000
OP    = 0x1600000
OP_STRIDE = 0x280000
KM    = 0x2000000
VM    = 0x2800000
KF    = 0x3000000
QF    = 0x5000000
VT    = 0x7000000
OF    = QF
STAMP = 0xC000000
RPF   = 0xD000000
RP_STRIDE = 0x40000
XHINT = RPF + 0x30000
OOB   = 0x7ffffff0
W_BYTES = 640 * 6144 * 2
XB = 2048 * 640 * 2
```

```python
from asmlib import *
from layout import *
from chain import saddr, vexpr, keep, nop, f2u, T0, T1, T2, T3, LANE, S_W, S_WS, WS, S_PTR
import math
S_X = 12; S_A = 16; S_Bv = 20; S_O = 24

def common(a, name, nwg):
    a(f"s_cmp_ge_u32 s2, {nwg}\ns_cbranch_scc1 {name}_end")
    a("s_load_dwordx2 s[4:5], s[0:1], 112")
    a(f"v_and_b32 v2, 63, v0\nv_lshrrev_b32 v1, 6, v0\ns_nop 0\nv_readfirstlane_b32 s{S_W}, v1")
def ws_sub(a, d, off, n):
    a(f"s_add_u32 s{d}, s4, {off}\ns_addc_u32 s{d+1}, s5, 0\ns_and_b32 s{d+1}, s{d+1}, 0xffff\ns_mov_b32 s{d+2}, {n}\ns_mov_b32 s{d+3}, 0x00020000")

def rowsum(a, v):
    for k in (1, 2, 4, 8): a(f"s_nop 1\nv_add_f32_dpp v{v}, v{v}, v{v} row_ror:{k} row_mask:0xf bank_mask:0xf")

def ln_body(a, variant, S_X=12, sc=''):
    vAd, vRaw, vX, vT = 3, 8, 128, 4
    a(f"s_lshl_b32 s34, s2, 3\ns_lshl_b32 s{T0}, s{S_W}, 2\ns_add_u32 s34, s34, s{T0}")
    vexpr(a, vAd, [(4, 2, 1280), (0, 4, 16)], [(34, 1280)])
    for i in range(5): a(f"buffer_load_dwordx4 {vr(vRaw+4*i,4)}, v{vAd}, s[{S_X}:{S_X+3}], 0 offen offset:{256*i}")
    if variant == "B":
        for p in range(4):
            a(f"s_mov_b32 s{T1}, {OP + p * OP_STRIDE}")
            for i in range(5): a(f"buffer_load_dwordx4 {vr(vRaw+20*(p+1)+4*i,4)}, v{vAd}, {WS}, s{T1} offen offset:{256*i}")
    a("s_mov_b32 s35, 0xffff0000")
    def unpack(src, dst, add):
        for j in range(20):
            if not add: a(f"v_lshlrev_b32 v{dst+2*j}, 16, v{src+j}\nv_and_b32 v{dst+2*j+1}, s35, v{src+j}")
            else: a(f"v_lshlrev_b32 v{vT}, 16, v{src+j}\nv_and_b32 v{vT+1}, s35, v{src+j}\nv_pk_add_f32 {vr(dst+2*j,2)}, {vr(dst+2*j,2)}, {vr(vT,2)}")
    if variant == "B":
        a("s_waitcnt vmcnt(15)"); unpack(vRaw + 20, vX, False)
        for p in range(1, 4): a(f"s_waitcnt vmcnt({15-5*p})"); unpack(vRaw + 20 * (p + 1), vX, True)
        unpack(vRaw, vX, True)
        for j in range(20): a(f"v_cvt_pk_bf16_f32 v{vRaw+j}, v{vX+2*j}, v{vX+2*j+1}")
        a(f"s_mov_b32 s{T1}, {X1}")
        for i in range(5): a(f"buffer_store_dwordx4 {vr(vRaw+4*i,4)}, v{vAd}, {WS}, s{T1} offen offset:{256*i}")
    else: a("s_waitcnt vmcnt(0)")
    unpack(vRaw, vX, False)
    a(f"v_pk_add_f32 {vr(vT,2)}, {vr(vX,2)}, {vr(vX+2,2)}")
    for j in range(2, 20): a(f"v_pk_add_f32 {vr(vT,2)}, {vr(vT,2)}, {vr(vX+2*j,2)}")
    a(f"v_add_f32 v{vT}, v{vT}, v{vT+1}"); rowsum(a, vT)
    a(f"v_mul_f32 v{vT}, {hex(f2u(1/640))}, v{vT}")
    for j in range(40): a(f"v_sub_f32 v{vX+j}, v{vX+j}, v{vT}")
    a(f"v_pk_mul_f32 {vr(vT,2)}, {vr(vX,2)}, {vr(vX,2)}")
    for j in range(1, 20): a(f"v_pk_fma_f32 {vr(vT,2)}, {vr(vX+2*j,2)}, {vr(vX+2*j,2)}, {vr(vT,2)}")
    a(f"v_add_f32 v{vT}, v{vT}, v{vT+1}"); rowsum(a, vT)
    a(f"v_mul_f32 v{vT}, {hex(f2u(1/640))}, v{vT}\nv_add_f32 v{vT+1}, {hex(f2u(1e-5))}, v{vT}\nv_rsq_f32 v{vT+1}, v{vT+1}\ns_nop 0")
    if variant == "B":
        a(f"v_mul_f32 v{vT}, v{vT}, v{vT+1}\nv_mul_f32 v{vT}, v{vT}, v{vT+1}\nv_add_f32 v{vT}, {hex(f2u(1e-5))}, v{vT}\nv_rsq_f32 v{vT}, v{vT}\ns_nop 0\nv_mul_f32 v{vT+1}, v{vT+1}, v{vT}")
    for j in range(40): a(f"v_mul_f32 v{vX+j}, v{vX+j}, v{vT+1}")
    vO = vRaw + 20
    for j in range(20): a(f"v_cvt_pk_bf16_f32 v{vO+j}, v{vX+2*j}, v{vX+2*j+1}")
    if variant == "B":
        a(f"s_mov_b32 s{T1}, {H2}")
        for i in range(5): a(f"buffer_store_dwordx4 {vr(vO+4*i,4)}, v{vAd}, {WS}, s{T1} offen offset:{256*i}")
    else:
        a(f"s_lshr_b32 s36, s2, 2\ns_and_b32 s37, s2, 3")
        vexpr(a, vAd, [(2, 2, 1024), (0, 2, 256), (4, 2, 16)], [(36, 40960), (S_W, 20480), (37, 64), HF])
        for i in range(5): a(f"s_mov_b32 s{T1}, {4096*i}\nbuffer_store_dwordx4 {vr(vO+4*i,4)}, v{vAd}, {WS}, s{T1} offen {sc}")

def tr_setup(a, vD, vR, rowbytes, terms, extra=0):
    for par in range(2):
        a(f"v_bfe_u32 v1, v{LANE}, 4, 1\nv_or_b32 v1, {2*par}, v1\nv_lshlrev_b32 v1, 1, v1\nv_and_b32 v3, 7, v{LANE}\nv_xor_b32 v3, v3, v1\nv_lshlrev_b32 v3, 4, v3")
        vexpr(a, vD + par, [(3, 3, rowbytes)], terms + [8 * par * rowbytes])
        a(f"v_add_u32 v{vD+par}, v{vD+par}, v3")
    if vR is None: return
    for i in range(4):
        a(f"v_bfe_u32 v1, v{LANE}, 3, 2\nv_xor_b32 v3, {i}, v1\nv_lshlrev_b32 v3, 5, v3")
        vexpr(a, vR + i, [(4, 2, 1024), (2, 2, 128), (0, 2, 8)], [(S_W, 40960)])
        a(f"v_add_u32 v{vR+i}, v{vR+i}, v3")
def tr_dma(a, srd_, vD, rowbytes, ks, lds, base=0):
    for k in range(4):
        a(f"s_add_u32 m0, s38, {lds + k*1024}\ns_mov_b32 s{T0}, {base + (32*ks + 16*(k>>1)) * rowbytes}")
        a(f"buffer_load_dwordx4 v{vD + (k&1)}, s[{srd_}:{srd_+3}], s{T0} offen lds")

def b2_kernels(a, names):
    kernel_begin(a, names[1]); common(a, "b2", 256)
    a("s_load_dwordx2 s[6:7], s[0:1], 96\ns_waitcnt lgkmcnt(0)"); srd(a, S_O, 6, XB); a("s_branch b2_body")
    kernel_begin(a, names[0]); common(a, "b2", 256)
    a("s_waitcnt lgkmcnt(0)"); ws_sub(a, S_O, X2, XB)
    a("b2_body:\ns_load_dwordx4 s[40:43], s[0:1], 80\ns_waitcnt lgkmcnt(0)")
    srd(a, S_WS, 4, WS_SIZE); srd(a, S_A, 40, 2048 * 1536 * 2); srd(a, S_Bv, 42, 2048 * 2)
    sS, sD = 34, 35
    a(f"s_and_b32 s{sS}, s2, 7\ns_lshl_b32 s{sS}, s{sS}, 2\ns_bfe_u32 s36, s2, 0x20003\ns_add_u32 s{sS}, s{sS}, s36\ns_lshr_b32 s{sD}, s2, 5")
    a(f"s_mul_i32 s38, s{S_W}, 40960")
    vDW, vU, vR, vG, vRd, vB, vXr, vFR, vAcc = 4, 6, 8, 12, 15, 18, 20, 32, 64
    P = 336
    tr_setup(a, vDW, vR, 4096, [(S_W, 384 * 4096), (sS, 128)])
    vexpr(a, vU, [(0, 6, 16)], [(sD, 5 * 49152), (S_W, 12288), UU])
    a(f"s_mov_b32 s39, {X1}")
    for k in range(3):
        a(f"v_add_u32 v1, {64*k}, v{LANE}\nv_min_u32 v1, 159, v1\nv_mul_u32_u24 v3, 6554, v1\nv_lshrrev_b32 v3, 16, v3\nv_mul_u32_u24 v7, 10, v3\nv_sub_u32 v1, v1, v7")
        a(f"s_lshl_b32 s{T0}, s{S_W}, 4\nv_add_u32 v3, s{T0}, v3\nv_mul_u32_u24 v{vRd+k}, {P}, v3\nv_lshl_add_u32 v{vRd+k}, v1, 5, v{vRd+k}")
        a(f"s_lshl_b32 s{T0}, s{sS}, 6\nv_add_u32 v3, s{T0}, v3\nv_mul_u32_u24 v{vG+k}, 1280, v3\nv_lshl_add_u32 v{vG+k}, v1, 4, v{vG+k}\ns_mul_i32 s{T0}, s{sD}, 160\nv_add_u32 v{vG+k}, s{T0}, v{vG+k}")
        a(f"v_lshlrev_b32 v3, 1, v3\nbuffer_load_ushort v{144+k}, v3, s[{S_Bv}:{S_Bv+3}], 0 offen")
        a(f"buffer_load_dwordx4 {vr(vXr+4*k,4)}, v{vG+k}, {WS}, s39 offen")
    keep(a, vG + 2, f"v_cmp_gt_u32 vcc, 32, v{LANE}")
    NS = 6
    def issue(ks):
        tr_dma(a, S_A, vDW, 4096, ks, (ks % NS) * 4096)
        for j in range(5): a(f"s_mov_b32 s{T0}, {j * 49152 + ks * 1024}\nbuffer_load_dwordx4 {ar(20*ks+4*j,4)}, v{vU}, {WS}, s{T0} offen")
    for ks in range(NS): issue(ks)
    for ks in range(13):
        if ks < 12:
            a(f"s_waitcnt vmcnt({9 * min(NS - 1, 11 - ks)})")
            for i in range(4):
                for q in range(2): a(f"ds_read_b64_tr_b16 {vr(vFR+16*(ks&1)+4*i+2*q,2)}, v{vR+i} offset:{(ks % NS)*4096 + q*512}")
        if ks > 0:
            for i in range(4):
                for j in range(5):
                    d = vr(vAcc + 20 * i + 4 * j, 4)
                    a(f"v_mfma_f32_16x16x32_bf16 {d}, {ar(20*(ks-1)+4*j,4)}, {vr(vFR+16*((ks-1)&1)+4*i,4)}, {'0' if ks == 1 else d}")
        a("s_waitcnt lgkmcnt(0)")
        if ks + NS < 12: issue(ks + NS)
    vW = 4
    vexpr(a, vW, [(0, 4, P), (4, 2, 16)], [(S_W, 64 * P)])
    a("s_barrier")
    for i in range(4):
        for j in range(5): a(f"ds_write_b128 v{vW}, {vr(vAcc+20*i+4*j,4)} offset:{16*i*P + 64*j}")
        if i % 2: a("s_waitcnt lgkmcnt(0)")
    a("s_barrier\ns_mov_b32 s35, 0xffff0000")
    vX = 32
    for k in range(3):
        for p in range(4):
            for h in range(2): a(f"ds_read_b128 {vr(vX+32*k+8*p+4*h,4)}, v{vRd+k} offset:{p*64*P + 16*h}")
        a("s_waitcnt lgkmcnt(0)")
    for k in range(3):
        b = vX + 32 * k
        for i in range(0, 8, 2): a(f"v_pk_add_f32 {vr(b+i,2)}, {vr(b+i,2)}, {vr(b+8+i,2)}\nv_pk_add_f32 {vr(b+16+i,2)}, {vr(b+16+i,2)}, {vr(b+24+i,2)}")
        for i in range(4): a(f"v_lshlrev_b32 v{b+8+2*i}, 16, v{vXr+4*k+i}\nv_and_b32 v{b+9+2*i}, s35, v{vXr+4*k+i}")
        a(f"v_lshlrev_b32 v{144+k}, 16, v{144+k}")
        for i in range(0, 8, 2): a(f"v_pk_add_f32 {vr(b+i,2)}, {vr(b+i,2)}, {vr(b+16+i,2)}")
        for i in range(8): a(f"v_add_f32 v{b+i}, v{b+i}, v{144+k}")
        for i in range(0, 8, 2): a(f"v_pk_add_f32 {vr(b+i,2)}, {vr(b+i,2)}, {vr(b+8+i,2)}")
        for i in range(4): a(f"v_cvt_pk_bf16_f32 v{b+16+i}, v{b+2*i}, v{b+2*i+1}")
        a(f"buffer_store_dwordx4 {vr(b+16,4)}, v{vG+k}, s[{S_O}:{S_O+3}], 0 offen")
    a("b2_end:\ns_endpgm")
    for n in names: kernel_desc(a, n, 148, 80, accum=148, agpr=240)
```

```python
from asmlib import *
from layout import *
from chain import *

LIN = [(0, 6, 16)]
def fail_exit(a, FAIL):
    a(f"{FAIL}:\ns_mov_b64 exec, 1\nv_mov_b32 v1, {ERR}\nv_mov_b32 v3, 1\nbuffer_atomic_add v3, v1, {WS}, 0 offen\ns_waitcnt vmcnt(0) lgkmcnt(0)\ns_endpgm")
def tmo(a, L, FAIL): a(f"s_sub_u32 s{S_TO}, s{S_TO}, 1\ns_cmp_lg_u32 s{S_TO}, 0\ns_cbranch_scc1 {L}\ns_branch {FAIL}")
def sbase(a, dst, terms):
    saddr(a, T0, terms); a(f"s_add_u32 s{dst}, s{S_PTR}, s{T0}\ns_addc_u32 s{dst+1}, s{S_PTR+1}, 0")

def emit_proj(a, name, opt):
    c = Ctx(a, name)
    FAIL = c.lab("fail")
    sH, sS, sHF, sOUT, sBUF, sFV, sC, sPC, sY, sRDY = 34, 35, 36, 37, 38, 39, 40, 41, 42, 43
    sA, sB = 44, 48
    a(f"s_lshr_b32 s{sY}, s{S_RANK}, 5\ns_sub_u32 s{sY}, s{sY}, 4\ns_lshl_b32 s{T0}, s{sY}, 3\ns_and_b32 s{sH}, s{S_RANK}, 7\ns_add_u32 s{sH}, s{sH}, s{T0}\ns_bfe_u32 s{sC}, s{S_RANK}, 0x20003")
    for d, lim in ((sA, 2), (sB, 1)):
        a(f"s_cmp_lt_u32 s{sC}, {lim}\ns_cselect_b32 s{d}, s{S_WK}, s{S_WQ}\ns_cselect_b32 s{d+1}, s{S_WK+1}, s{S_WQ+1}\ns_mov_b32 s{d+2}, {W_BYTES}\ns_mov_b32 s{d+3}, 0x00020000")
    vD, vTR, vHs, vHr, vSt, vFl, vCl, vNEG = 4, 8, 11, 12, 13, 15, 16, 20
    vAcc, vO, vFR = 24, 48, 64
    HB0 = 122880
    vexpr(a, vHs, LIN, [(S_W, 10240), HF])
    def hdma(k):
        a(f"s_add_u32 m0, s{sBUF}, {k*1024}\ns_add_u32 s{T0}, s{sHF}, {k*1024}")
        a(f"buffer_load_dwordx4 v{vHs}, {WS}, s{T0} offen lds")
    a(f"s_mov_b32 s{sHF}, 0\ns_mul_i32 s{sBUF}, s{S_W}, 10240\ns_add_u32 s{sBUF}, s{sBUF}, {HB0}")
    a(f"v_bfe_u32 v1, v{LANE}, 4, 1\ns_and_b32 s{T0}, s{S_W}, 1\ns_lshl_b32 s{T0}, s{T0}, 1\nv_or_b32 v1, s{T0}, v1\nv_lshlrev_b32 v1, 1, v1\nv_and_b32 v3, 7, v{LANE}\nv_xor_b32 v3, v3, v1\nv_lshlrev_b32 v3, 4, v3")
    for i in range(3):
        if i < 2: a(f"s_lshl_b32 s{T1}, s{sC}, 1\ns_add_u32 s{T1}, s{T1}, {i}"); smod(a, T1, 3)
        else: a(f"s_mov_b32 s{T1}, s{sC}")
        vexpr(a, vD + i, [(3, 3, 12288)], [(sH, 384), (S_W, 8 * 12288), (T1, 128)]); a(f"v_add_u32 v{vD+i}, v{vD+i}, v3")
    def wdma(ch):
        a(f"s_lshl_b32 s{T1}, s{S_W}, 10")
        for k in range(5):
            a(f"s_mov_b32 s{T0}, {(160*ch + 32*k) * 12288}")
            for i, d in enumerate((sA, sB, S_WV)):
                a(f"s_add_u32 m0, s{T1}, {(ch & 1) * 61440 + k * 12288 + i * 4096}\ns_nop 0")
                a(f"buffer_load_dwordx4 v{vD+i}, s[{d}:{d+3}], s{T0} offen lds")
    ROW = [(4, 2, 1024), (2, 2, 128)]
    a(f"s_and_b32 s{T1}, s{S_W}, 1\ns_lshl_b32 s{T1}, s{T1}, 1\nv_bfe_u32 v3, v{LANE}, 1, 1\nv_or_b32 v3, s{T1}, v3\nv_bfe_u32 v1, v{LANE}, 3, 2\nv_xor_b32 v3, v3, v1\nv_lshlrev_b32 v3, 5, v3\ns_lshr_b32 s{T1}, s{S_W}, 1")
    vexpr(a, vTR, ROW + [(0, 1, 16)], [(T1, 4096)]); a(f"v_add_u32 v{vTR}, v{vTR}, v3")
    a(f"v_bfe_u32 v1, v{LANE}, 3, 2\nv_xor_b32 v3, s{S_W}, v1\nv_lshlrev_b32 v3, 5, v3")
    vexpr(a, vTR + 1, ROW + [(0, 2, 8)], [8192]); a(f"v_add_u32 v{vTR+1}, v{vTR+1}, v3")
    a(f"s_lshl_b32 s{T1}, s{sC}, 2\ns_add_u32 s{T1}, s{T1}, s{S_W}\ns_cmp_ge_u32 s{T1}, 6\ns_cselect_b32 s{T2}, {QF - KF - 6144}, 0")
    vexpr(a, vSt, LIN, [(sH, 12288), (T1, 1024), (T2, 1), KF])
    vexpr(a, vSt + 1, LIN, [(sH, 12288), (T1, 1024), VT])
    W = lambda tl, ks: ar((ks * 3 + tl) * 4, 4)
    wdma(0); wdma(1)
    for ch in range(4):
        a(f"s_waitcnt vmcnt({[15, 15, 15, 10][ch]})\ns_barrier")
        if ch & 1: a(f"v_add_u32 v{vTR}, 61440, v{vTR}\nv_add_u32 v{vTR+1}, 61440, v{vTR+1}")
        for k in range(5):
            for tl in range(3):
                for q in range(2):
                    a(f"ds_read_b64_tr_b16 {ar(((5*ch+k)*3+tl)*4+2*q, 2)}, v{vTR+(tl>>1)} offset:{k * 12288 + q * 512 + (8 if tl == 1 else 0)}")
            a("s_waitcnt lgkmcnt(6)")
        if ch & 1: a(f"v_subrev_u32 v{vTR}, 61440, v{vTR}\nv_subrev_u32 v{vTR+1}, 61440, v{vTR+1}")
        a("s_waitcnt lgkmcnt(0)\ns_barrier")
        if ch == 0: arrive(a)
        if ch < 2: wdma(ch + 2)
        if ch == 2:
            census(a)
            for k in range(10): hdma(k)
    rtstamp(a, 2); cystamp(a, 5)
    vexpr(a, vFl, [(0, 6, 4)], [(sH, 128), (sC, 4), F_PROJ]); keep(a, vFl, f"v_cmp_gt_u32 vcc, 1, v{LANE}")
    a(f"s_lshl_b32 s{T1}, s{sC}, 2\ns_add_u32 s{T1}, s{T1}, s{S_W}\ns_lshl_b32 s{T1}, s{T1}, 4\nv_add_u32 v3, s{T1}, v{LANE}")
    a(f"s_and_b32 s{T2}, s{sH}, 3\ns_mul_i32 s{T2}, s{T2}, 160\nv_add_u32 v3, s{T2}, v3")
    a(f"v_lshrrev_b32 v{vCl}, 6, v3\nv_lshlrev_b32 v{vCl}, 14, v{vCl}\nv_bfe_u32 v1, v3, 4, 2\nv_lshl_add_u32 v{vCl}, v1, 11, v{vCl}\nv_and_b32 v1, 15, v3\nv_lshl_add_u32 v{vCl}, v1, 4, v{vCl}")
    a(f"s_lshr_b32 s{T2}, s{sH}, 2\ns_lshl_b32 s{T2}, s{T2}, 8\nv_add_u32 v{vCl}, s{T2}, v{vCl}\ns_cmp_lt_u32 s{T1}, 160\ns_cselect_b32 s{T1}, 16, 0")
    keep(a, vCl, f"v_cmp_gt_u32 vcc, s{T1}, v{LANE}")
    for i in range(4): a(f"v_mov_b32 v{vNEG+i}, -1")
    a(f"v_lshlrev_b32 v{vHr}, 4, v{LANE}\nv_add_u32 v{vHr}, {HB0}, v{vHr}")
    a(f"s_mov_b32 s{sS}, 0\ns_mov_b32 s{sOUT}, 0")
    RA = 3
    def rd(ks):
        for b in range(2): a(f"ds_read_b128 {vr(vFR + 8*(ks % (RA+1)) + 4*b, 4)}, v{vHr} offset:{(b*20+ks)*1024}")
    def stores():
        return [f"buffer_store_dwordx4 {vr(vO,4)}, v{vSt}, {WS}, s{sOUT} offen sc1",
                f"s_add_u32 s{T0}, s{sOUT}, 6144\nbuffer_store_dwordx4 {vr(vO+4,4)}, v{vSt}, {WS}, s{T0} offen sc1",
                f"buffer_store_dwordx4 {vr(vO+8,4)}, v{vSt+1}, {WS}, s{sOUT} offen sc1",
                f"buffer_store_dwordx4 {vr(vNEG,4)}, v{vCl}, {WS}, s{sPC} offen sc1\ns_add_u32 s{sOUT}, s{sOUT}, {32*12288}"]
    def flag(val):
        L = c.lab("f")
        a(f"s_cmp_lg_u32 s{S_W}, 0\ns_cbranch_scc1 {L}\nv_mov_b32 v3, {val}\nbuffer_store_dword v3, v{vFl}, {WS}, 0 offen sc1\n{L}:")
    def body(deferred):
        for ks in range(RA): rd(ks)
        a(f"s_add_u32 s{sHF}, s{sHF}, 40960\ns_min_u32 s{sHF}, s{sHF}, {63*40960}\ns_sub_u32 s{T1}, s{sBUF}, {HB0}\ns_add_u32 s{T2}, s{sBUF}, {HB0}\ns_cmp_ge_u32 s{sBUF}, {HB0}\ns_cselect_b32 s{sBUF}, s{T1}, s{T2}")
        side = (stores() if deferred else []) + list(range(10))
        for ks in range(20):
            if ks + RA < 20: rd(ks + RA)
            a(f"s_waitcnt lgkmcnt({2 * min(RA, 19 - ks)})")
            for tl in range(3):
                for b in range(2):
                    d = vr(vAcc + 8 * tl + 4 * b, 4); h = vr(vFR + 8 * (ks % (RA+1)) + 4 * b, 4)
                    A, B = (h, W(tl, ks)) if tl == 2 else (W(tl, ks), h)
                    a(f"v_mfma_f32_16x16x32_bf16 {d}, {A}, {B}, {'0' if ks == 0 else d}")
                if tl == 0 and side:
                    x = side.pop(0)
                    hdma(x) if isinstance(x, int) else a(x)
        a(f"v_xor_b32 v{vHr}, {HB0}, v{vHr}\ns_add_u32 s{sS}, s{sS}, 1")
        a(f"s_lshr_b32 s{T1}, s{sS}, 3\ns_xor_b32 s{T1}, s{T1}, s{S_POL}\ns_and_b32 s{T1}, s{T1}, 1\ns_lshl_b32 s{T1}, s{T1}, 13\ns_min_u32 s{T0}, s{sS}, 63\ns_lshl_b32 s{T0}, s{T0}, 18\ns_add_u32 s{sPC}, s{T0}, s{T1}\ns_add_u32 s{sPC}, s{sPC}, {RPF}")
        cv = lambda d, s_: a(f"v_cvt_pk_bf16_f32 v{d}, v{s_}, v{s_+1}\nv_cvt_pk_bf16_f32 v{d+1}, v{s_+2}, v{s_+3}")
        for b in range(2): cv(vO + 4 * b, vAcc + 4 * b); cv(vO + 4 * b + 2, vAcc + 8 + 4 * b)
        cv(vO + 8, vAcc + 16); cv(vO + 10, vAcc + 20)
    L0 = c.lab("first"); LOOP = c.lab("loop"); L1 = c.lab("n")
    a(f"s_waitcnt vmcnt(0)\ns_barrier\n{L0}:")
    body(False)
    a(f"s_cmp_eq_u32 s{sS}, 3\ns_cbranch_scc1 {LOOP}")
    for x in stores(): a(x)
    a("s_waitcnt vmcnt(0)\ns_barrier"); flag(f"s{sS}")
    a(f"s_branch {L0}")
    a(f".p2align 6\n{LOOP}:\ns_waitcnt vmcnt(0)\ns_barrier\ns_sub_u32 s{sFV}, s{sS}, 1"); flag(f"s{sFV}")
    body(True)
    a(f"s_cmp_lt_u32 s{sS}, 64\ns_cbranch_scc1 {LOOP}")
    for x in stores(): a(x)
    a("s_waitcnt vmcnt(0)\ns_barrier"); flag(64)
    rtstamp(a, 3); cystamp(a, 6)
    if opt.get("nob1"): a("s_endpgm")
    a(f"s_mul_i32 s{T1}, s{sY}, 24\ns_and_b32 s{T2}, s{S_RANK}, 31\ns_add_u32 s{T1}, s{T1}, s{T2}")
    vexpr(a, 3, [(0, 6, 128)], [(T1, 65536), (S_W, 16384)])
    a(f"s_mov_b32 s{T1}, 8192\nbuffer_load_dword v4, v3, s[{S_W2}:{S_W2+3}], 0 offen\nbuffer_load_dword v5, v3, s[{S_W2}:{S_W2+3}], s{T1} offen")
    sDT, sFT, sW1, sH2, sLB = 34, 36, 37, 38, 39
    a(f"s_and_b32 s{sDT}, s{S_RANK}, 7\ns_mul_i32 s{sFT}, s{sY}, 3\ns_add_u32 s{sFT}, s{sFT}, s{sC}")
    vDW, vDH, vRW, vRH, vPF, vBi, vAc, vFW, vFH, vX = 6, 7, 9, 10, 11, 12, 16, 56, 64, 84
    a(f"v_bfe_u32 v1, v{LANE}, 4, 2\nv_lshlrev_b32 v1, 1, v1\nv_and_b32 v3, 7, v{LANE}\nv_xor_b32 v3, v3, v1\nv_lshlrev_b32 v3, 4, v3")
    vexpr(a, vDW, [(3, 3, 3072)], [(sFT, 256), (S_W, 8 * 3072)]); a(f"v_add_u32 v{vDW}, v{vDW}, v3")
    for k in range(2):
        a(f"s_mul_i32 s{T1}, s{S_W}, 80\ns_add_u32 s{T1}, s{T1}, {16*k}\nv_add_u32 v1, s{T1}, v{LANE}\nv_mul_u32_u24 v3, 6554, v1\nv_lshrrev_b32 v3, 16, v3\nv_mul_u32_u24 v{vDH+k}, 10, v3\nv_sub_u32 v1, v1, v{vDH+k}")
        a(f"v_mul_u32_u24 v{vDH+k}, 1280, v3\nv_lshl_add_u32 v{vDH+k}, v1, 4, v{vDH+k}\ns_mul_i32 s{T1}, s{sDT}, 160\nv_add_u32 v{vDH+k}, s{T1}, v{vDH+k}")
    a(f"s_and_b32 s{T1}, s{S_W}, 1\ns_lshl_b32 s{T1}, s{T1}, 1\nv_bfe_u32 v3, v{LANE}, 1, 1\nv_or_b32 v3, s{T1}, v3\nv_bfe_u32 v1, v{LANE}, 3, 2\nv_xor_b32 v3, v3, v1\nv_lshlrev_b32 v3, 5, v3\ns_lshr_b32 s{T1}, s{S_W}, 1")
    vexpr(a, vRW, [(2, 4, 128), (0, 1, 16)], [(T1, 4096)]); a(f"v_add_u32 v{vRW}, v{vRW}, v3")
    vexpr(a, vRH, [(2, 4, 160), (0, 2, 8)], [16384])
    vexpr(a, vPF, [(3, 2, 128), (0, 3, 4)], [F_FIN])
    a(f"s_load_dwordx2 s[{sA}:{sA+1}], s[0:1], 72\ns_waitcnt lgkmcnt(0)\ns_and_b32 s{sA+1}, s{sA+1}, 0xffff\ns_mov_b32 s{sA+2}, 3072\ns_mov_b32 s{sA+3}, 0x00020000")
    vexpr(a, 3, [(4, 2, 16)], [(sFT, 256), (S_W, 64)])
    a(f"buffer_load_dwordx4 {vr(vBi,4)}, v3, s[{sA}:{sA+3}], 0 offen")
    for i in range(40): a(f"v_mov_b32 v{vAc+i}, 0")
    def w1dma():
        a(f"s_lshl_b32 s{T1}, s{S_W}, 10\ns_add_u32 m0, s{T1}, s{sLB}\ns_add_u32 s{T1}, s{T1}, s{sLB}\nbuffer_load_dwordx4 v{vDW}, s[{S_W1}:{S_W1+3}], s{sW1} offen lds")
        a(f"s_add_u32 m0, s{T1}, 4096\ns_add_u32 s{T0}, s{sW1}, 128\nbuffer_load_dwordx4 v{vDW}, s[{S_W1}:{S_W1+3}], s{T0} offen lds")
    a(f"s_mov_b32 s{sS}, 0\ns_mov_b32 s{sW1}, 0\ns_mov_b32 s{sH2}, {H2}\ns_mov_b32 s{sLB}, 0")
    w1dma()
    LOOP = c.lab("bl"); W1 = c.lab("bw"); G1 = c.lab("bg")
    a(f"{LOOP}:\ns_cmp_lg_u32 s{S_W}, 0\ns_cbranch_scc1 {G1}\ns_mov_b32 s{S_TO}, {TIMEOUT}\ns_and_b32 s{T2}, s{sS}, 3\ns_lshl_b32 s{T2}, s{T2}, 9\nv_mov_b32 v3, s{sS}")
    a(f"{W1}:\nbuffer_load_dword v4, v{vPF}, {WS}, s{T2} offen sc1\ns_waitcnt vmcnt(0)\nv_cmp_ge_u32 vcc, v3, v4\ns_cbranch_vccz {G1}\ns_sleep 2")
    tmo(a, W1, FAIL)
    a(f"{G1}:\ns_barrier")
    a(f"s_mul_i32 s{T1}, s{S_W}, 1280\ns_add_u32 m0, s{T1}, 16384\ns_add_u32 s{T1}, s{T1}, {16384+256}\nbuffer_load_dwordx4 v{vDH}, {WS}, s{sH2} offen sc1 lds")
    a(f"s_mov_b32 m0, s{T1}\ns_xor_b32 s{sLB}, s{sLB}, 8192\nbuffer_load_dwordx4 v{vDH+1}, {WS}, s{sH2} offen sc1 lds")
    a(f"s_add_u32 s{sW1}, s{sW1}, {32*3072}\ns_add_u32 s{sH2}, s{sH2}, {32*1280}")
    w1dma()
    a("s_waitcnt vmcnt(2)\ns_barrier")
    for i in range(2):
        for q in range(2): a(f"ds_read_b64_tr_b16 {vr(vFW+4*i+2*q,2)}, v{vRW} offset:{q*2048 + 8*i}")
    for j in range(5):
        for q in range(2): a(f"ds_read_b64_tr_b16 {vr(vFH+4*j+2*q,2)}, v{vRH} offset:{q*2560 + 32*j}")
    a(f"v_xor_b32 v{vRW}, 8192, v{vRW}")
    for j in range(5):
        a(f"s_waitcnt lgkmcnt({8-2*j})")
        for i in range(2):
            d = vr(vAc + 8 * j + 4 * i, 4)
            a(f"v_mfma_f32_16x16x32_bf16 {d}, {vr(vFW+4*i,4)}, {vr(vFH+4*j,4)}, {d}")
    a(f"s_add_u32 s{sS}, s{sS}, 1\ns_cmp_lt_u32 s{sS}, 64\ns_cbranch_scc1 {LOOP}")
    k0 = -2 * math.sqrt(2 / math.pi) * math.log2(math.e)
    a(f"s_mov_b32 s{T1}, 0xffff0000\ns_mov_b32 s{T2}, {hex(f2u(k0 * 0.044715))}\nv_mov_b32 v4, {hex(f2u(k0))}")
    for i in range(4): a(f"v_lshlrev_b32 v{vFW+2*i}, 16, v{vBi+i}\nv_and_b32 v{vFW+1+2*i}, s{T1}, v{vBi+i}")
    vexpr(a, 3, LIN, [(sDT, 5 * 49152), (sFT, 4096), (S_W, 1024), UU])
    for j in range(5):
        b = vAc + 8 * j; t = vX + 8 * j
        for i in range(0, 8, 2): a(f"v_pk_add_f32 {vr(b+i,2)}, {vr(b+i,2)}, {vr(vFW+i,2)}")
        for i in range(8): a(f"v_mul_f32 v{t+i}, v{b+i}, v{b+i}")
        for i in range(8): a(f"v_fma_f32 v{t+i}, v{t+i}, s{T2}, v4")
        for i in range(8): a(f"v_mul_f32 v{t+i}, v{t+i}, v{b+i}")
        for i in range(8): a(f"v_exp_f32 v{t+i}, v{t+i}")
        for i in range(8): a(f"v_add_f32 v{t+i}, 1.0, v{t+i}")
        for i in range(8): a(f"v_rcp_f32 v{t+i}, v{t+i}")
        for i in range(8): a(f"v_mul_f32 v{b+i}, v{b+i}, v{t+i}")
        for i in range(4): a(f"v_cvt_pk_bf16_f32 v{t+i}, v{b+2*i}, v{b+2*i+1}")
        a(f"s_mov_b32 s{T0}, {49152*j}\nbuffer_store_dwordx4 {vr(t,4)}, v3, {WS}, s{T0} offen")
    a("s_waitcnt vmcnt(0)"); rtstamp(a, 4); a("s_endpgm")
    fail_exit(a, FAIL)

def emit_att(a, name, opt):
    c = Ctx(a, name)
    sH, sS, sO, sO2, sRDY, sC, sFB, sV = 34, 35, 36, 37, 38, 39, 40, 44
    FAIL = c.lab("fail")
    a(f"s_lshr_b32 s{T0}, s{S_RANK}, 5\ns_lshl_b32 s{T0}, s{T0}, 3\ns_and_b32 s{sH}, s{S_RANK}, 7\ns_add_u32 s{sH}, s{sH}, s{T0}")
    a("s_waitcnt vmcnt(0)\ns_barrier"); arrive(a)
    census(a)
    vL, vKM, vVM, vCF, vOF, vT, vOP, vRow = 4, 5, 6, 7, 8, 10, 9, 14
    vMK, vS, vM, vP, vG, vD, vO, vkm, vvm = 20, 36, 52, 60, 68, 72, 88, 96, 120
    aK, aQ, aV = 0, 48, 96
    sOB, sOV, vPA = 48, 12, 144
    vexpr(a, vL, LIN, [(sH, 12288)])
    vexpr(a, vKM, [(2, 1, 4 * 64), (3, 1, 2 * 64), (0, 1, 64), (4, 2, 16)], [(sH, 3072), KM])
    vexpr(a, vVM, [(0, 6, 4)], [(sH, 3072), VM])
    vexpr(a, vCF, [(0, 6, 4)], [(sH, 128), F_CHAIN])
    vexpr(a, vOF, [(0, 6, 4)], [(sH, 128), (S_W, 4), F_ATT]); keep(a, vOF, f"v_cmp_gt_u32 vcc, 1, v{LANE}")
    sbase(a, sFB, [(sH, 128), F_PROJ])
    a(f"s_lshr_b32 s{T1}, s{sH}, 3"); sbase(a, sOB, [(T1, 512), F_O])
    for i in range(5):
        a(f"v_add_u32 v1, {64*i}, v{LANE}\nv_mul_u32_u24 v3, 1639, v1\nv_lshrrev_b32 v3, 16, v3\nv_mul_u32_u24 v{vPA+i}, 40, v3\nv_sub_u32 v1, v1, v{vPA+i}")
        a(f"v_mul_u32_u24 v{vPA+i}, {2048*160}, v3\nv_lshl_add_u32 v{vPA+i}, v1, 2, v{vPA+i}\ns_mul_i32 s{T2}, s{sH}, 160\nv_add_u32 v{vPA+i}, s{T2}, v{vPA+i}")
    vFN = 15; sN = 42
    a(f"s_and_b32 s{T2}, s{sH}, 7\ns_xor_b32 s{sN}, s{S_W}, 2"); vexpr(a, vFN, [(0, 6, 4)], [(sN, 512), (T1, 128), (T2, 4), F_FIN]); keep(a, vFN, f"v_cmp_gt_u32 vcc, 1, v{LANE}")
    vexpr(a, vRow, [(0, 6, 4)], [(sH, 1280)])
    vexpr(a, vT, [(2, 2, 8), (0, 2, 1)]); vexpr(a, vT + 1, [(4, 2, 8)])
    a(f"v_sub_u32 v{vT}, v{vT}, v{vT+1}\nv_mov_b32 v{vT+1}, {hex(f2u(-1e30))}")
    for rb in range(2):
        for b in range(2):
            for r in range(4):
                a(f"v_cmp_gt_i32 vcc, {4*b + r - 4*rb}, v{vT}\ns_nop 1\nv_cndmask_b32 v{vMK+8*rb+4*b+r}, 0, v{vT+1}, vcc")
    for i in range(12): a(f"v_mov_b32 v{vvm+2*i+1}, 0")
    a(f"v_mov_b32 v{vG+1}, 0\nv_mov_b32 v{vG+3}, 0")
    a(f"s_mov_b32 s{sC}, {hex(f2u(192 ** -0.5 * math.log2(math.e)))}\ns_mov_b32 s{sS}, s{S_W}\ns_mov_b32 s{sRDY}, 0")
    LOOP = c.lab("loop"); W2 = c.lab("w"); G2 = c.lab("g")
    sN, sNO = 42, 43
    def fetch():
        W1 = c.lab("w"); G1 = c.lab("g")
        a(f"s_mov_b32 s{S_TO}, {TIMEOUT}\ns_mul_i32 s{sNO}, s{sN}, {32*12288}")
        a(f"{W1}:\ns_cmp_gt_u32 s{sRDY}, s{sN}\ns_cbranch_scc1 {G1}")
        a(f"s_load_dwordx4 s[{sV}:{sV+3}], s[{sFB}:{sFB+1}], 0 glc")
        a(f"s_waitcnt lgkmcnt(0)\ns_min_u32 s{sRDY}, s{sV}, s{sV+1}\ns_min_u32 s{sRDY}, s{sRDY}, s{sV+2}")
        tmo(a, W1, FAIL)
        a(f"{G1}:")
        for base, dst in ((KF, aK), (VT, aV), (QF, aQ)):
            for k0 in range(0, 12, 4):
                a(f"s_add_u32 s{T0}, s{sNO}, {base + k0*1024}")
                for k in range(4): a(f"buffer_load_dwordx4 {ar(dst+4*(k0+k),4)}, v{vL}, {WS}, s{T0} offen offset:{k*1024} sc1")
    def nap(long_):
        L = c.lab("nap")
        a(f"s_sleep 1\ns_cmp_ge_u32 s{sS}, 61\ns_cbranch_scc1 {L}\ns_sleep {long_}\n{L}:")
    a(f"s_mov_b32 s{sN}, s{sS}"); fetch()
    NF = c.lab("nf")
    a(f"{LOOP}:\ns_cmp_ge_u32 s{sS}, 64\ns_cbranch_scc1 {NF}\ns_mov_b32 s{S_TO}, {TIMEOUT}\ns_mul_i32 s{sO}, s{sS}, {32*12288}\ns_mul_i32 s{sO2}, s{sS}, {32*3072}")
    a("s_waitcnt vmcnt(0)")
    for u in range(6):
        for rb in range(2):
            for b in range(2):
                d = vr(vS + 8 * rb + 4 * b, 4)
                a(f"v_mfma_f32_16x16x32_bf16 {d}, {ar(aK+4*(6*b+u),4)}, {ar(aQ+4*(6*rb+u),4)}, {vr(vMK+8*rb+4*b,4) if u == 0 else d}")
    a(f"v_mov_b32 v{vT+1}, s{sS}\ns_mov_b64 exec, 7")
    a(f"{W2}:\nbuffer_load_dword v{vT}, v{vCF}, {WS}, 0 offen sc1\ns_waitcnt vmcnt(0)\nv_cmp_ge_u32 vcc, v{vT+1}, v{vT}\ns_cbranch_vccz {G2}"); nap(opt.get("nap1", 6))
    tmo(a, W2, FAIL)
    a(f"{G2}:\ns_mov_b64 exec, -1")
    for u in range(6): a(f"buffer_load_dwordx4 {vr(vkm+4*u,4)}, v{vKM}, {WS}, s{sO2} offen offset:{u*512} sc1")
    for t in range(12): a(f"buffer_load_dword v{vvm+2*t}, v{vVM}, {WS}, s{sO2} offen offset:{t*256} sc1")
    for u in range(6):
        a(f"s_waitcnt vmcnt({17-u})")
        for rb in range(2):
            d = vr(vM + 4 * rb, 4)
            a(f"v_mfma_f32_16x16x32_bf16 {d}, {vr(vkm+4*u,4)}, {ar(aQ+4*(6*rb+u),4)}, {'0' if u == 0 else d}")
    nop(a, 8)
    def both(f):
        for rb in range(2): f(rb, [vS + 8 * rb + i for i in range(8)] + [vM + 4 * rb, vM + 4 * rb + 1], vT + 2 * rb, vT + 2 * rb + 1)
    def red(op):
        for sw in ("v_permlane16_swap_b32", "v_permlane32_swap_b32"):
            both(lambda rb, x, m, t: a(f"v_mov_b32 v{t}, v{m}"))
            a("s_nop 1")
            both(lambda rb, x, m, t: a(f"{sw} v{t}, v{m}"))
            both(lambda rb, x, m, t: a(f"{op} v{m}, v{m}, v{t}"))
    both(lambda rb, x, m, t: a(f"v_max3_f32 v{m}, v{x[0]}, v{x[1]}, v{x[2]}\nv_max3_f32 v{t}, v{x[3]}, v{x[4]}, v{x[5]}"))
    both(lambda rb, x, m, t: a(f"v_max3_f32 v{m}, v{m}, v{x[6]}, v{x[7]}\nv_max3_f32 v{t}, v{t}, v{x[8]}, v{x[9]}"))
    both(lambda rb, x, m, t: a(f"v_max_f32 v{m}, v{m}, v{t}"))
    red("v_max_f32")
    both(lambda rb, x, m, t: a(f"v_mul_f32 v{m}, s{sC}, v{m}"))
    both(lambda rb, x, m, t: [a(f"v_fma_f32 v{r}, v{r}, s{sC}, -v{m}") for r in x])
    both(lambda rb, x, m, t: [a(f"v_exp_f32 v{r}, v{r}") for r in x])
    both(lambda rb, x, m, t: a(f"v_add_f32 v{m}, v{x[0]}, v{x[1]}\nv_add_f32 v{t}, v{x[2]}, v{x[3]}"))
    for i in range(4, 10, 2): both(lambda rb, x, m, t: a(f"v_add_f32 v{m}, v{m}, v{x[i]}\nv_add_f32 v{t}, v{t}, v{x[i+1]}"))
    both(lambda rb, x, m, t: a(f"v_add_f32 v{m}, v{m}, v{t}"))
    red("v_add_f32")
    both(lambda rb, x, m, t: a(f"v_rcp_f32 v{m}, v{m}"))
    a("s_nop 0")
    both(lambda rb, x, m, t: [a(f"v_mul_f32 v{r}, v{r}, v{m}") for r in x])
    both(lambda rb, x, m, t: [a(f"v_cvt_pk_bf16_f32 v{vP+4*rb+i}, v{x[2*i]}, v{x[2*i+1]}") for i in range(4)] + [a(f"v_cvt_pk_bf16_f32 v{vG+2*rb}, v{x[8]}, v{x[9]}")])
    a(f"s_waitcnt vmcnt(0)\ns_add_u32 s{sO}, s{sO}, {OF}")
    def pv(u):
        for kind in range(2):
            for rb in range(2):
                for h in range(2):
                    T = 2 * u + h; d = vr((vD if u % 2 == 0 else vS) + 8 * rb + 4 * h, 4)
                    if kind == 0: a(f"v_mfma_f32_16x16x32_bf16 {d}, {ar(aV+4*T,4)}, {vr(vP+4*rb,4)}, 0")
                    else: a(f"v_mfma_f32_16x16x16_bf16 {d}, {vr(vvm+2*T,2)}, {vr(vG+2*rb,2)}, {d}")
    def out(u):
        for rb in range(2):
            s_ = (vD if u % 2 == 0 else vS) + 8 * rb
            for i in range(4): a(f"v_cvt_pk_bf16_f32 v{vO+4*rb+i}, v{s_+2*i}, v{s_+2*i+1}")
            k = 6 * rb + u
            a(f"s_add_u32 s{T0}, s{sO}, {(k >> 2) * 4096}")
            a(f"buffer_store_dwordx4 {vr(vO+4*rb,4)}, v{vL}, {WS}, s{T0} offen offset:{(k & 3) * 1024} sc1")
    pv(0)
    for u in range(1, 6): pv(u); out(u - 1)
    nop(a, 8); out(5)
    a(f"s_add_u32 s{T0}, s{sS}, 1\nv_mov_b32 v{vT+2}, s{T0}\ns_waitcnt vmcnt(0)\nbuffer_store_dword v{vT+2}, v{vOF}, {WS}, 0 offen sc1")
    a(f"s_add_u32 s{sN}, s{sS}, 4\ns_cmp_ge_u32 s{sN}, 64\ns_cbranch_scc1 {NF}"); fetch(); a(f"{NF}:")
    vR, vX = vkm, vS
    SKIP = c.lab("skip"); abl = opt.get("abl", 9)
    if abl == 0: a(f"s_branch {SKIP}")
    a(f"s_sub_u32 s{sN}, s{sS}, 2\ns_cmp_ge_u32 s{sN}, 64\ns_cbranch_scc1 {SKIP}\ns_mul_i32 s{sO}, s{sN}, {32*1280}\ns_add_u32 s{sN}, s{sN}, 1\nv_mov_b32 v{vT+2}, s{sN}")
    for i in range(5): a(f"buffer_load_dword v{vR+20+i}, v{vRow}, s[{S_X}:{S_X+3}], s{sO} offen offset:{256*i}")
    W3 = c.lab("w"); G3 = c.lab("g")
    a(f"s_mov_b32 s{S_TO}, {TIMEOUT}\n{W3}:")
    regs = [12, 20, 52, 76]
    for k, r in enumerate(regs): a(f"s_load_dwordx8 s[{r}:{r+7}], s[{sOB}:{sOB+1}], {128*k} glc")
    a("s_waitcnt lgkmcnt(0)")
    for r in [q + i for q in regs for i in range(8)][1:]: a(f"s_min_u32 s12, s12, s{r}")
    a(f"s_cmp_ge_u32 s12, s{sN}\ns_cbranch_scc1 {G3}"); nap(opt.get("nap2", 16))
    tmo(a, W3, FAIL)
    a(f"{G3}:")
    if abl == 1: a(f"s_branch {SKIP}")
    for p in range(4):
        a(f"s_lshr_b32 s{T0}, s{sO}, 3\ns_add_u32 s{T0}, s{T0}, {OP + p * OP_STRIDE}")
        for i in range(5): a(f"buffer_load_dword v{vR+5*p+i}, v{vPA+i}, {WS}, s{T0} offen sc1")
    a(f"s_mov_b32 s{T2}, 0xffff0000")
    def unpack(src, add):
        for j in range(5):
            if not add: a(f"v_lshlrev_b32 v{vX+2*j}, 16, v{src+j}\nv_and_b32 v{vX+2*j+1}, s{T2}, v{src+j}")
            else: a(f"v_lshlrev_b32 v{vX+10}, 16, v{src+j}\nv_and_b32 v{vX+11}, s{T2}, v{src+j}\nv_pk_add_f32 {vr(vX+2*j,2)}, {vr(vX+2*j,2)}, {vr(vX+10,2)}")
    a("s_waitcnt vmcnt(20)"); unpack(vR + 20, False)
    for p in range(4): a(f"s_waitcnt vmcnt({15-5*p})"); unpack(vR + 5 * p, True)
    for j in range(5): a(f"v_cvt_pk_bf16_f32 v{vR+j}, v{vX+2*j}, v{vX+2*j+1}")
    if abl == 2: a(f"s_branch {SKIP}")
    a(f"s_add_u32 s{T0}, s{sO}, {X1}")
    for i in range(5): a(f"buffer_store_dword v{vR+i}, v{vRow}, {WS}, s{T0} offen offset:{256*i} {opt.get('x1sc', '')}")
    if abl == 3: a(f"s_branch {SKIP}")
    unpack(vR, False)
    m, t = vX + 10, vX + 11
    def wavesum():
        a(f"v_add_f32 v{m}, v{m}, v{t}")
        for k in (1, 2, 4, 8): a(f"s_nop 1\nv_add_f32_dpp v{m}, v{m}, v{m} row_ror:{k} row_mask:0xf bank_mask:0xf")
        for sw in ("v_permlane16_swap_b32", "v_permlane32_swap_b32"): a(f"v_mov_b32 v{t}, v{m}\ns_nop 1\n{sw} v{t}, v{m}\nv_add_f32 v{m}, v{m}, v{t}")
        a(f"v_mul_f32 v{m}, {hex(f2u(1/640))}, v{m}")
    a(f"v_pk_add_f32 {vr(m,2)}, {vr(vX,2)}, {vr(vX+2,2)}")
    for j in range(2, 5): a(f"v_pk_add_f32 {vr(m,2)}, {vr(m,2)}, {vr(vX+2*j,2)}")
    wavesum()
    for j in range(10): a(f"v_sub_f32 v{vX+j}, v{vX+j}, v{m}")
    a(f"v_pk_mul_f32 {vr(m,2)}, {vr(vX,2)}, {vr(vX,2)}")
    for j in range(1, 5): a(f"v_pk_fma_f32 {vr(m,2)}, {vr(vX+2*j,2)}, {vr(vX+2*j,2)}, {vr(m,2)}")
    wavesum()
    a(f"v_add_f32 v{t}, {hex(f2u(1e-5))}, v{m}\nv_rsq_f32 v{t}, v{t}\ns_nop 0\nv_mul_f32 v{m}, v{m}, v{t}\nv_mul_f32 v{m}, v{m}, v{t}\nv_add_f32 v{m}, {hex(f2u(1e-5))}, v{m}\nv_rsq_f32 v{m}, v{m}\ns_nop 0\nv_mul_f32 v{t}, v{t}, v{m}")
    for j in range(10): a(f"v_mul_f32 v{vX+j}, v{vX+j}, v{t}")
    for j in range(5): a(f"v_cvt_pk_bf16_f32 v{vR+5+j}, v{vX+2*j}, v{vX+2*j+1}")
    a(f"s_add_u32 s{T0}, s{sO}, {H2}")
    for i in range(5): a(f"buffer_store_dword v{vR+5+i}, v{vRow}, {WS}, s{T0} offen offset:{256*i} sc1")
    a(f"s_waitcnt vmcnt(0)\nbuffer_store_dword v{vT+2}, v{vFN}, {WS}, 0 offen sc1\n{SKIP}:")
    a(f"s_add_u32 s{sS}, s{sS}, 4\ns_cmp_lt_u32 s{sS}, 66\ns_cbranch_scc1 {LOOP}\ns_waitcnt vmcnt(0)")
    rtstamp(a, 4); a("s_endpgm")
    fail_exit(a, FAIL)

def emit_oproj(a, name):
    c = Ctx(a, name)
    sY, sCS, sS, sO, sA, sFB, sV, sFO = 34, 35, 36, 37, 38, 40, 44, 46
    FAIL = c.lab("fail")
    a(f"s_lshr_b32 s{sY}, s{S_RANK}, 5\ns_sub_u32 s{sY}, s{sY}, 4\ns_and_b32 s{sCS}, s{S_RANK}, 7")
    vD, vTR, vL, vW, vR, vAt = 4, 9, 10, 11, 12, 14
    vAcc, vFR, vX = 24, 64, 160
    for i in range(5):
        a(f"v_add_u32 v1, {64*i}, v{LANE}\nv_mul_u32_u24 v3, 6554, v1\nv_lshrrev_b32 v3, 16, v3")
        a(f"v_mul_u32_u24 v{vD+i}, 10, v3\nv_sub_u32 v1, v1, v{vD+i}\nv_lshlrev_b32 v1, 4, v1\nv_mul_u32_u24 v{vD+i}, 1280, v3\nv_add_u32 v{vD+i}, v{vD+i}, v1")
        saddr(a, T0, [(sY, 1536 * 1280), (S_W, 384 * 1280), (sCS, 160)]); a(f"v_add_u32 v{vD+i}, s{T0}, v{vD+i}")
    vexpr(a, vTR, [(4, 2, 4 * 160), (2, 2, 160), (0, 2, 8)], [(S_W, 40960)])
    def wdma(ks):
        a(f"s_mul_i32 s{T1}, s{S_W}, 40960\ns_mov_b32 s{T0}, {32 * ks * 1280}")
        for i in range(5):
            a(f"s_add_u32 m0, s{T1}, {(ks % 8) * 5120 + i * 1024}\ns_nop 0")
            a(f"buffer_load_dwordx4 v{vD+i}, s[{S_WO}:{S_WO+3}], s{T0} offen lds")
    W = lambda tl, ks: ar((ks * 5 + tl) * 4, 4)
    for ks in range(8): wdma(ks)
    for ks in range(12):
        a(f"s_waitcnt vmcnt({5 * min(7, 11 - ks)})")
        for tl in range(5):
            for q in range(2): a(f"ds_read_b64_tr_b16 {ar((ks*5+tl)*4+2*q,2)}, v{vTR} offset:{(ks % 8) * 5120 + q * 16 * 160 + tl * 32}")
        a("s_waitcnt lgkmcnt(0)")
        if ks == 0: a("s_barrier"); arrive(a)
        if ks + 8 < 12: wdma(ks + 8)
    census(a)
    a("s_barrier")
    rtstamp(a, 2)
    vexpr(a, vL, LIN, [(sY, 8 * 12288), (S_W, 2 * 12288), OF])
    PITCH = 336
    vexpr(a, vW, [(2, 2, 8 * PITCH), (0, 2, PITCH), (4, 2, 16)], [(S_W, 32 * PITCH)])
    for k in range(2):
        a(f"v_add_u32 v1, {64*k}, v{LANE}\nv_min_u32 v1, 79, v1\nv_mul_u32_u24 v3, 6554, v1\nv_lshrrev_b32 v3, 16, v3\nv_mul_u32_u24 v{vR+k}, 10, v3\nv_sub_u32 v1, v1, v{vR+k}")
        a(f"s_lshl_b32 s{T0}, s{S_W}, 3\nv_add_u32 v3, s{T0}, v3")
        a(f"v_mul_u32_u24 v{vAt+k}, 160, v3\nv_lshl_add_u32 v{vAt+k}, v1, 4, v{vAt+k}\nv_mul_u32_u24 v{vR+k}, {PITCH}, v3\nv_lshl_add_u32 v{vR+k}, v1, 5, v{vR+k}")
    keep(a, vAt + 1, f"v_cmp_gt_u32 vcc, 16, v{LANE}")
    sbase(a, sFB, [(sY, 8 * 128), (S_W, 2 * 128), F_ATT])
    saddr(a, sA, [(sCS, 2048 * 160), (sY, OP_STRIDE), OP])
    vPG = 16
    vexpr(a, vPG, [(0, 6, 4)], [(S_W, 512), (sY, 128), (sCS, 4), F_O]); keep(a, vPG, f"v_cmp_gt_u32 vcc, 1, v{LANE}")
    a(f"s_mov_b32 s{sS}, 0\ns_mov_b32 s{sO}, 0")
    LOOP = c.lab("loop"); W1 = c.lab("w"); G1 = c.lab("g"); NP = c.lab("np"); BODY = c.lab("b")
    PRE = 5; sPRE = 39
    def flagload():
        a(f"s_and_b32 s{sFO}, s{sS}, 3\ns_lshl_b32 s{sFO}, s{sFO}, 2\ns_add_u32 s{sFO+1}, s{sFO}, 128")
        a(f"s_load_dword s{sV}, s[{sFB}:{sFB+1}], s{sFO} glc\ns_load_dword s{sV+1}, s[{sFB}:{sFB+1}], s{sFO+1} glc")
    def flagtest(): a(f"s_waitcnt lgkmcnt(0)\ns_min_u32 s{T0}, s{sV}, s{sV+1}\ns_cmp_gt_u32 s{T0}, s{sS}")
    sON = 42
    def ld(ks, so=sO):
        for b in range(2):
            k = (ks // 6) * 12 + b * 6 + ks % 6
            a(f"s_add_u32 s{T0}, s{so}, {(k >> 2) * 4096}")
            a(f"buffer_load_dwordx4 {vr(vFR+8*ks+4*b,4)}, v{vL}, {WS}, s{T0} offen offset:{(k & 3) * 1024} sc1")
    prog = f"buffer_store_dword v3, v{vPG}, {WS}, 0 offen sc1"
    a(f"v_mov_b32 v3, 0\n.p2align 6\n{LOOP}:\ns_mov_b32 s{S_TO}, {TIMEOUT}\n{W1}:")
    flagload(); flagtest(); a(f"s_cbranch_scc1 {G1}\ns_sleep 1")
    tmo(a, W1, FAIL)
    a(f"{G1}:")
    for ks in range(PRE): ld(ks)
    a(f"{BODY}:\ns_add_u32 s{sS}, s{sS}, 1")
    for ks in range(12):
        if ks == 2: flagload()
        if ks + PRE == 12:
            flagtest(); a(f"s_cselect_b32 s{sPRE}, 1, 0\ns_add_u32 s{sO}, s{sO}, {32*12288}\ns_cmp_lg_u32 s{sPRE}, 0\ns_cselect_b32 s{sON}, s{sO}, 0x40000000")
        if ks + PRE < 12: ld(ks + PRE)
        else: ld(ks + PRE - 12, sON)
        a(f"s_waitcnt vmcnt({2 * PRE})")
        if ks == PRE: a(prog)
        for tl in range(5):
            for b in range(2):
                d = vr(vAcc + 8 * tl + 4 * b, 4)
                a(f"v_mfma_f32_16x16x32_bf16 {d}, {W(tl, ks)}, {vr(vFR+8*ks+4*b,4)}, {'0' if ks == 0 else d}")
    a("s_barrier")
    nop(a, 6)
    for tl in range(5):
        for b in range(2): a(f"ds_write_b128 v{vW}, {vr(vAcc+8*tl+4*b,4)} offset:{b*4*PITCH + tl*64}")
    a("s_waitcnt lgkmcnt(0)\ns_barrier")
    for k in range(2):
        for p in range(4):
            for h in range(2): a(f"ds_read_b128 {vr(vX+32*k+8*p+4*h,4)}, v{vR+k} offset:{p*32*PITCH+16*h}")
        a("s_waitcnt lgkmcnt(0)")
    for k in range(2):
        b = vX + 32 * k
        for i in range(0, 8, 2): a(f"v_pk_add_f32 {vr(b+i,2)}, {vr(b+i,2)}, {vr(b+8+i,2)}\nv_pk_add_f32 {vr(b+16+i,2)}, {vr(b+16+i,2)}, {vr(b+24+i,2)}")
        for i in range(0, 8, 2): a(f"v_pk_add_f32 {vr(b+i,2)}, {vr(b+i,2)}, {vr(b+16+i,2)}")
        for i in range(4): a(f"v_cvt_pk_bf16_f32 v{b+8+i}, v{b+2*i}, v{b+2*i+1}")
        a(f"buffer_store_dwordx4 {vr(b+8,4)}, v{vAt+k}, {WS}, s{sA} offen sc1")
    a(f"v_mov_b32 v3, s{sS}")
    a(f"s_add_u32 s{sA}, s{sA}, {32*160}\ns_cmp_lg_u32 s{sPRE}, 0\ns_cbranch_scc1 {BODY}\ns_waitcnt vmcnt(0)\n{prog}\ns_cmp_lt_u32 s{sS}, 64\ns_cbranch_scc1 {LOOP}")
    a("s_waitcnt vmcnt(0)"); rtstamp(a, 4); a("s_endpgm")
    fail_exit(a, FAIL)
```

```python
import sys
from asmlib import *
from akernel import layer_a_kernel
from small import *
KN = "interleave_layers__memory_aug_recurrent_mem_tr__mixer_token_mlp__prompt"
DEFAULT = dict(lgap=8, preSide=30, sdepth=1, mspin0=60, oflag=2, pflag=2, mflag=0, preS=32)
def gen(opt=None):
    opt = dict(DEFAULT, **(opt or {}))
    a = Asm()
    hdr = [l.rstrip("\n") for l in open(f"cdna_kernels/{KN}.s.ref") if l.startswith(";") and "launch" not in l.lower() and "Harness parses" not in l] if opt.get("hdr", 1) else []
    a.lines += hdr
    L = [("la0_kernel", 256, 256, 163840), ("b20_kernel", 256, 256, 163840), ("la1_kernel", 256, 256, 163840), ("b21_kernel", 256, 256, 163840)]
    for n, g, b, lds in L: a.lines.append(f"; @launch kernel={n} grid=({g},1,1) block=({b},1,1) lds={lds}")
    a('.amdgcn_target "amdgcn-amd-amdhsa--gfx950"')
    b2_kernels(a, ["b20_kernel", "b21_kernel"])
    layer_a_kernel(a, ["la0_kernel", "la1_kernel"], opt)
    return a.text()
if __name__ == "__main__":
    out = sys.argv[1] if len(sys.argv) > 1 else f"cdna_kernels/{KN}.s"
    opt = eval(sys.argv[2]) if len(sys.argv) > 2 else {}
    open(out, "w").write(gen(opt))
```

```python
from asmlib import *
from layout import *
from chain import *
from workers import *
import small

def layer_a_kernel(a, names, opt):
    RT["on"] = bool(opt.get("rt"))
    for l, n in reversed(list(enumerate(names))):
        kernel_begin(a, n)
        a("s_cmp_ge_u32 s2, 256\ns_cbranch_scc1 la_exit")
        if RT["on"]: a("s_memrealtime s[92:93]")
        a(f"s_mov_b32 s{S_L}, {l}")
        a("s_load_dwordx4 s[4:7], s[0:1], 104\ns_load_dwordx4 s[44:47], s[0:1], 0\ns_load_dwordx8 s[36:43], s[0:1], 16\ns_load_dwordx2 s[48:49], s[0:1], 64\ns_load_dwordx2 s[50:51], s[0:1], 80")
        a(f"v_and_b32 v2, 63, v0\nv_lshrrev_b32 v1, 6, v0\ns_getreg_b32 s34, hwreg(HW_REG_XCC_ID)\ns_and_b32 s34, s34, 7\nv_readfirstlane_b32 s{S_W}, v1\ns_waitcnt lgkmcnt(0)")
        if l: a(f"s_add_u32 s44, s6, {X2}\ns_addc_u32 s45, s7, 0\ns_branch la_body")
    a("la_body:")
    srd(a, S_DBG, 4, 256); a("s_mov_b64 s[4:5], s[6:7]")
    srd(a, S_WS, 4, WS_SIZE); srd(a, S_X, 44, XB); srd(a, S_MEM, 46, 10240)
    srd(a, S_WQ, 36, W_BYTES); srd(a, S_WK, 38, W_BYTES); srd(a, S_WV, 40, W_BYTES); srd(a, S_WO, 42, W_BYTES)
    srd(a, S_W1, 48, 2048 * 1536 * 2); srd(a, S_W2, 50, 2048 * 1536 * 2)
    DBG = f"s[{S_DBG}:{S_DBG+3}]"
    a(f"s_mov_b32 s{S_FB}, 0\ns_mov_b32 s{S_POL}, 0\ns_cmp_ge_u32 s{S_W}, 2\ns_cbranch_scc1 la_ln\ns_cmp_eq_u32 s{S_W}, 1\ns_cbranch_scc1 la_probe")
    a(f"s_lshl_b32 s35, s34, 5\nv_mov_b32 v20, 1\ns_mov_b64 exec, 1\nbuffer_atomic_add v20, off, {DBG}, s35 sc0\nv_mov_b32 v21, 0\ns_lshl_b32 s35, s2, 7\ns_add_u32 s35, s35, {MBX}\nbuffer_store_dword v21, off, {WS}, s35 sc1\ns_mov_b64 exec, -1\ns_branch la_clr")
    a("la_probe:\ns_lshr_b32 s35, s2, 6\ns_lshl_b32 s35, s35, 17\ns_and_b32 s36, s2, 63\ns_lshl_b32 s36, s36, 7\ns_add_u32 s35, s35, s36")
    a(f"s_add_u32 s35, s35, {PROBE}\ns_add_u32 s36, s4, s35\ns_addc_u32 s37, s5, 0\nv_lshlrev_b32 v3, 13, v2\ns_mov_b64 exec, 3\nbuffer_store_dword v2, v3, {WS}, s35 offen sc1\ns_mov_b64 exec, -1\ns_mov_b32 s40, 0\ns_waitcnt vmcnt(0)")
    a("s_mov_b32 s38, -1\ns_mov_b32 s39, -1\ns_memtime s[42:43]\ns_waitcnt lgkmcnt(0)")
    for k in range(4):
        a(f"s_load_dword s41, s[36:37], {0x2000 * (k & 1)} glc\ns_mov_b32 s40, s42\ns_waitcnt lgkmcnt(0)\ns_memtime s[42:43]\ns_waitcnt lgkmcnt(0)\ns_sub_u32 s40, s42, s40\ns_min_u32 s{38 + (k & 1)}, s{38 + (k & 1)}, s40")
    a("s_cmp_gt_u32 s38, s39\ns_cselect_b32 s40, 1, 0\ns_lshr_b32 s41, s34, 2\ns_xor_b32 s40, s40, s41\nv_mov_b32 v20, s40")
    a(f"la_clr:\ns_lshl_b32 s{T0}, s2, 7\nv_add_u32 v4, s{T0}, v0\nv_lshlrev_b32 v4, 4, v4")
    for i in range(4): a(f"v_mov_b32 v{8+i}, -1")
    a(f"v_and_b32 v5, 0x1ffff, v4\nv_cmp_gt_u32 vcc, 0x18000, v5\ns_nop 1\nv_cndmask_b32 v12, 0, -1, vcc")
    for k in range(4): a(f"s_mov_b32 s{T0}, {int(RI) + 0x80000 * k}\nbuffer_store_dwordx4 v[8:11], v4, {WS}, s{T0} offen sc1")
    a(f"v_mov_b32 v13, v12\nv_mov_b32 v14, v12\nv_mov_b32 v15, v12\nv_cmp_gt_u32 vcc, 0x40000, v4\nv_mov_b32 v6, {OOB}\ns_mov_b32 s{T0}, {RPF}\nv_cndmask_b32 v6, v6, v4, vcc")
    for i in range(4): a(f"v_mov_b32 v{16+i}, 0")
    a(f"buffer_store_dwordx4 v[12:15], v4, {WS}, s{T0} offen sc1\nbuffer_store_dwordx4 v[16:19], v6, {WS}, 0 offen sc1")
    assert RING_END == int(RI) + 0x200000 and CTL_END == 0x40000
    a(f"s_lshl_b32 s{T0}, s{S_W}, 2\ns_waitcnt vmcnt(7)\nv_mov_b32 v3, s{T0}\ns_mov_b64 exec, 1\nds_write_b32 v3, v20\ns_mov_b64 exec, -1\ns_waitcnt lgkmcnt(0)\ns_branch la_tk")
    a(f"la_ln:\ns_sub_u32 s{S_W}, s{S_W}, 2")
    small.ln_body(a, "A", S_X, "sc1")
    a(f"s_add_u32 s{S_W}, s{S_W}, 2")
    a(f"la_tk:\ns_barrier\nv_mov_b32 v3, 0\nds_read_b64 v[4:5], v3\ns_getreg_b32 s34, hwreg(HW_REG_XCC_ID)\ns_and_b32 s34, s34, 7\ns_waitcnt lgkmcnt(0)\nv_readfirstlane_b32 s{S_TK}, v4\nv_readfirstlane_b32 s{S_POL}, v5\ns_barrier\ns_lshl_b32 s{S_POL}, s{S_POL}, 16\ns_add_u32 s{S_POL}, s{S_POL}, 1")
    a(f"s_lshl_b32 s{S_RANK}, s34, 5\ns_add_u32 s{S_RANK}, s{S_RANK}, s{S_TK}\ns_cmp_lt_u32 s{S_TK}, 32\ns_cbranch_scc1 la_role")
    a("s_waitcnt vmcnt(0)\ns_barrier"); arrive(a); census(a)
    a("la_exit:\ns_endpgm")
    a(f"la_arrive:\ns_or_b32 s{T2}, s{S_W}, s{S_FB}\ns_cmp_lg_u32 s{T2}, 0\ns_cbranch_scc1 la_cret")
    a(f"s_mov_b32 s{T2}, s{S_POL}\ns_atomic_add s{T2}, s[{S_DBG}:{S_DBG+1}], 132 glc\ns_waitcnt lgkmcnt(0)\ns_add_u32 s{S_POL}, s{S_POL}, s{T2}\ns_and_b32 s{T2}, s{S_POL}, 0xffff\ns_cmp_lg_u32 s{T2}, 256\ns_cbranch_scc1 la_cret")
    a(f"v_lshlrev_b32 v1, 2, v{LANE}\nbuffer_load_dword v250, v1, {DBG}, 0 offen sc1\ns_cmp_gt_u32 s{S_POL}, {(128 << 16) + 256}\ns_cselect_b32 s{S_POL}, 3, 1")
    if "pol" in opt: a(f"s_mov_b32 s{S_POL}, {1 + 2 * opt['pol']}")
    a(f"v_and_b32 v1, 7, v{LANE}\nv_cmp_eq_u32 vcc, 0, v1\ns_waitcnt vmcnt(0)\nv_cmp_ne_u32 s[{T2}:{T3}], 32, v250\ns_and_b64 vcc, vcc, s[{T2}:{T3}]\ns_cselect_b32 s{T2}, 4, {4 if opt.get('force_fb') else 0}\ns_or_b32 s{S_POL}, s{S_POL}, s{T2}")
    a(f"v_lshlrev_b32 v1, 7, v{LANE}\nv_mov_b32 v250, s{S_POL}")
    for k in range(4): a(f"s_mov_b32 s{T2}, {MBX + 8192 * k}\nbuffer_store_dword v250, v1, {WS}, s{T2} offen sc1")
    a(f"s_setpc_b64 s[{T0}:{T1}]")
    a(f"la_census:\ns_cmp_lg_u32 s{S_FB}, 0\ns_cbranch_scc1 la_cret\ns_mov_b32 s{S_TO}, {TIMEOUT}\ns_lshl_b32 s{T2}, s2, 7\ns_add_u32 s{T2}, s{T2}, {MBX}")
    a(f"la_cpoll:\nbuffer_load_dword v3, off, {WS}, s{T2} sc1\ns_waitcnt vmcnt(0)\nv_readfirstlane_b32 s{T3}, v3\ns_cmp_lg_u32 s{T3}, 0\ns_cbranch_scc1 la_call")
    a(f"s_sleep 2\ns_sub_u32 s{S_TO}, s{S_TO}, 1\ns_cmp_lg_u32 s{S_TO}, 0\ns_cbranch_scc1 la_cpoll\ns_endpgm")
    a(f"la_call:\ns_bfe_u32 s{S_POL}, s{T3}, 0x10001\ns_and_b32 s{T3}, s{T3}, 4\ns_cbranch_scc1 la_redo\nla_cret:\ns_setpc_b64 s[{T0}:{T1}]")
    a(f"la_redo:\nv_lshlrev_b32 v1, 2, v{LANE}\nbuffer_load_dword v3, v1, {DBG}, 0 offen sc1\ns_getreg_b32 s34, hwreg(HW_REG_XCC_ID)\ns_and_b32 s34, s34, 7\ns_mov_b32 s{S_RANK}, s{S_TK}\ns_mov_b32 s{S_FB}, 1\ns_waitcnt vmcnt(0)")
    for x in range(7): a(f"v_readlane_b32 s36, v3, {8*x}\ns_cmp_gt_u32 s34, {x}\ns_cselect_b32 s36, s36, 0\ns_add_u32 s{S_RANK}, s{S_RANK}, s36")
    if opt.get("force_fb"): a(f"s_mov_b32 s{S_RANK}, s2")
    a("s_waitcnt vmcnt(0) lgkmcnt(0)\ns_barrier")
    a("la_role:")
    rtstamp(a, 0, 92); rtstamp(a, 1)
    a(f"s_and_b32 s35, s{S_RANK}, 31\ns_cmp_ge_u32 s{S_RANK}, 128\ns_cbranch_scc1 la_wk\ns_cmp_ge_u32 s35, 24\ns_cbranch_scc1 la_att")
    a(f"s_cmp_lg_u32 s{S_FB}, 0\ns_cbranch_scc1 la_fb")
    o = dict(opt, flags=1)
    emit_chain(a, "lan", False, o)
    a("la_fb:"); emit_chain(a, "laf", True, o)
    a("la_att:"); emit_att(a, "laa", opt)
    a("la_wk:\ns_cmp_lt_u32 s35, 24\ns_cbranch_scc1 la_proj")
    emit_oproj(a, "lao")
    a("la_proj:"); emit_proj(a, "lap", opt)
    small.emit_mixer(a, opt)
    for n in names: kernel_desc(a, n, 256, accum=256, agpr=256)
```

```python
from asmlib import *
from layout import *
import math, struct

S_PTR = 4
S_WS = 8; S_WQ = 12; S_WK = 16; S_WV = 20; S_WO = 24; S_MEM = 28
S_W = 32; S_RANK = 33
S_FB = 3
S_POL = 6; S_TK = 7
S_X = 72; S_W1 = 76; S_W2 = 80
S_DBG = 84
T0, T1, T2, T3 = 60, 61, 62, 63
S_L = 65
S_TO = 64
TIMEOUT = 400000
LANE = 2
WS = f"s[{S_WS}:{S_WS+3}]"

def f2u(x): return struct.unpack("<I", struct.pack("<f", x))[0]

class Ctx:
    def __init__(self, a, name):
        self.a = a; self.name = name
    def lab(self, b): return self.a.label(self.name + "_" + b)

def saddr(a, dst, terms):
    terms = list(terms) + [(S_L, t.stride) for t in terms if isinstance(t, PerLayer)]
    c = sum(int(t) for t in terms if isinstance(t, int))
    a(f"s_mov_b32 s{dst}, {c & 0xffffffff}")
    for t in terms:
        if not isinstance(t, int):
            a(f"s_mul_i32 s{T3}, s{t[0]}, {t[1]}\ns_add_u32 s{dst}, s{dst}, s{T3}")

def vexpr(a, dst, fields, terms=(), tmp=1):
    first = True
    for (sh, bits, mul) in fields:
        d = dst if first else tmp
        a(f"v_bfe_u32 v{d}, v{LANE}, {sh}, {bits}")
        a(f"v_mul_u32_u24 v{d}, {mul}, v{d}")
        if not first: a(f"v_add_u32 v{dst}, v{dst}, v{tmp}")
        first = False
    if terms:
        saddr(a, T0, terms); a(f"v_add_u32 v{dst}, s{T0}, v{dst}")

def keep(a, dst, cond, tmp=1, other=OOB):
    a(cond); a(f"v_mov_b32 v{tmp}, {other}\ns_nop 0\nv_cndmask_b32 v{dst}, v{tmp}, v{dst}, vcc")
def keepbit(a, dst, bit, want, tmp=1):
    keep(a, dst, f"v_bfe_u32 v{tmp}, v{LANE}, {bit}, 1\nv_cmp_eq_u32 vcc, {want}, v{tmp}", tmp)
def smod(a, r, n, times=1):
    for _ in range(times): a(f"s_sub_u32 s{T3}, s{r}, {n}\ns_cmp_ge_u32 s{r}, {n}\ns_cselect_b32 s{r}, s{T3}, s{r}")
def nop(a, n):
    while n > 0:
        k = min(n, 16); a(f"s_nop {k-1}"); n -= k

RT = {"on": False}
def cystamp(a, i):
    if RT["on"]: a("s_memtime s[90:91]\ns_waitcnt lgkmcnt(0)"); rtstamp(a, i, 90)
def rtstamp(a, i, sreg=None):
    if not RT["on"]: return
    if sreg is None: a("s_memrealtime s[90:91]\ns_waitcnt lgkmcnt(0)"); sreg = 90
    saddr(a, T0, [(S_RANK, 256), (S_W, 64), (S_L, 0x10000), STAMP + 0x800000 + 4 * i])
    a(f"v_mov_b32 v1, s{sreg}\ns_mov_b64 exec, 1\nbuffer_store_dword v1, off, {WS}, s{T0}\ns_mov_b64 exec, -1")

def arrive(a):
    a(f"s_call_b64 s[{T0}:{T1}], la_arrive")
def mixer(a, again):
    a(f"s_call_b64 s[66:67], la_mixer\ns_branch {again}")
def census(a):
    a(f"s_call_b64 s[{T0}:{T1}], la_census")

def emit_chain(a, name, fb, opt):
    c = Ctx(a, name)
    isc = "sc1" if fb else ""
    stamps = opt.get("stamps", 0); nocheck = opt.get("nocheck")
    oflag = opt.get("oflag"); pflag = opt.get("pflag"); sflag = opt.get("sflag")
    NSEG = 64
    sTK, sH, sT, sX, sFJ, sF0, sS = 34, 35, 36, 37, 38, 39, 41
    sI0, sI1, sI2, sI3 = 42, 43, 44, 45
    sP0, sP1, sKV, sKM, sSEQ, sC = 46, 47, 48, 49, 52, 53
    sB = 54
    sRDY, sFM, sXB, sXV, sRV, sFB = 56, 68, 70, 72, 88, 100
    ST = 12
    def stamp(i):
        if stamps and (i == 0 or i in opt.get("sel", range(8))): a(f"s_memtime s[{ST+2*i}:{ST+2*i+1}]")
    def decode():
        a(f"s_lshr_b32 s{sX}, s{S_RANK}, 5\ns_and_b32 s{sTK}, s{S_RANK}, 31")
        a(f"s_mul_i32 s{T0}, s{sTK}, 86\ns_lshr_b32 s{T0}, s{T0}, 8\ns_mul_i32 s{T1}, s{T0}, 3\ns_sub_u32 s{sT}, s{sTK}, s{T1}\ns_lshl_b32 s{sH}, s{sX}, 3\ns_add_u32 s{sH}, s{sH}, s{T0}")
        a(f"s_mov_b32 s{sFJ}, s{sTK}"); smod(a, sFJ, 20)
        a(f"s_lshr_b32 s{sF0}, s{sFJ}, 1\ns_add_u32 s{sF0}, s{sF0}, 1")
        a(f"s_mov_b32 s{sB}, 0xff00ff00\ns_mov_b32 s{sB+1}, s{sB}")
    decode()
    def mfrag(ph):
        if ph < 8: a(f"s_add_u32 s{T0}, s{S_W}, {ph >> 1}\ns_and_b32 s{T0}, s{T0}, 3\ns_add_u32 s{T0}, s{T0}, {4 * (ph & 1)}\ns_add_u32 s{T0}, s{T0}, s{sF0}")
        else: a(f"s_add_u32 s{T0}, s{sF0}, {ph}")
        smod(a, T0, 10)
    def ofrag(ph):
        a(f"s_add_u32 s{T0}, s{S_W}, 1\ns_and_b32 s{T0}, s{T0}, 3\ns_mul_i32 s{T0}, s{T0}, 6\ns_add_u32 s{T0}, s{T0}, s{sTK}\ns_add_u32 s{T0}, s{T0}, {ph}"); smod(a, T0, 24)
    WA_QK, WA_O, WV_V = 0, 160, 176
    vDQ, vDO, vTR, vTO = 3, 4, 5, 6
    vexpr(a, vDQ, [(3, 3, 12288), (0, 3, 16)], [(sH, 384), (sT, 128), (S_W, 8 * 12288)])
    vexpr(a, vDO, [(2, 4, 1280), (0, 2, 16)], [(sX, 1536 * 1280), (sFJ, 64), (S_W, 16 * 1280)])
    SIG = lambda p: [(4, 1, 16 * p), (5, 1, 4 * p), (3, 1, 32 * p), (2, 1, p), (0, 2, 8)]
    vexpr(a, vTR, SIG(128), [(S_W, 32)]); vexpr(a, vTO, SIG(64))
    def dma(srd_, vsrc, stepbytes, k0, k1, ldsbase):
        a(f"s_lshl_b32 s{T1}, s{S_W}, 10")
        for k in range(k0, k1):
            a(f"s_add_u32 m0, s{T1}, {ldsbase + (k - k0) * 4096}")
            a(f"s_mov_b32 s{T0}, {k * stepbytes}")
            a(f"buffer_load_dwordx4 v{vsrc}, s[{srd_}:{srd_+3}], s{T0} offen lds")
    def trread(ldsbase, dst):
        for ph in range(10):
            mfrag(ph)
            a(f"s_lshl_b32 s{T0}, s{T0}, 13\ns_add_u32 s{T0}, s{T0}, {ldsbase}\nv_add_u32 v1, s{T0}, v{vTR}")
            for q in range(4): a(f"ds_read_b64_tr_b16 {dst(ph, q)}, v1 offset:{(8 * (q >> 1) + 2 * (q & 1)) * 128}")
            if ph % 3 == 2: a("s_waitcnt lgkmcnt(0)")
        a("s_waitcnt lgkmcnt(0)\ns_barrier")
    dma(S_WQ, vDQ, 32 * 12288, 0, 20, 0)
    dma(S_WK, vDQ, 32 * 12288, 0, 20, 81920)
    a("s_waitcnt vmcnt(20)\ns_barrier")
    trread(0, lambda ph, q: ar(WA_QK + 16 * ph + 2 * q, 2))
    arrive(a)
    dma(S_WV, vDQ, 32 * 12288, 0, 20, 0)
    a("s_waitcnt vmcnt(20)\ns_barrier")
    trread(81920, lambda ph, q: ar(WA_QK + 16 * ph + 8 + 2 * q, 2))
    dma(S_WO, vDO, 64 * 1280, 0, 20, 81920)
    a("s_waitcnt vmcnt(20)\ns_barrier")
    trread(0, lambda ph, q: vr(WV_V + 8 * ph + 2 * q, 2))
    dma(S_WO, vDO, 64 * 1280, 20, 24, 0)
    census(a)
    a("s_waitcnt vmcnt(0)\ns_barrier")
    for ph in range(6):
        ofrag(ph)
        a(f"s_lshl_b32 s{T0}, s{T0}, 12\ns_add_u32 s{T0}, s{T0}, 81920"); smod(a, T0, 163840); a(f"v_add_u32 v1, s{T0}, v{vTO}")
        for tl in range(2):
            for q in range(4): a(f"ds_read_b64_tr_b16 {ar(WA_O + 16 * ph + 8 * tl + 2 * q, 2)}, v1 offset:{(8 * (q >> 1) + 2 * (q & 1)) * 64 + 32 * tl}")
        a("s_waitcnt lgkmcnt(0)")
    a("s_barrier")
    AGAIN = c.lab("again")
    a(f"{AGAIN}:"); decode()
    rtstamp(a, 2)
    WQ = lambda ph: ar(WA_QK + 16 * ph, 8)
    WK = lambda ph: ar(WA_QK + 16 * ph + 8, 8)
    WV = lambda ph: vr(WV_V + 8 * ph, 8)
    WO = lambda ph, tl: ar(WA_O + 16 * ph + 8 * tl, 8)
    vIDX = 3
    vPld = 4
    vLM = 7
    vOld = 18
    vZw, vVw, vVMst, vSEQ, vFw, vHint = 24, 25, 26, 27, 28, 29
    vA = 30
    vCK = 42
    vNEG = 44
    vID = 48
    vSTP, vSTI, vSTD = 52, 53, 54
    vG = 56
    vQ, vK, vV, vF = 60, 64, 68, 72
    vKV = 80
    vVM = 96
    vD = 104
    vT = 112
    vFR = 124
    vRW = 132
    LM, LF, LZ, LV, LS, LSTAMP = 0, 12288, 24576, 27648, 28672, 32768
    ZP = 40
    LIN = [(0, 6, 16)]
    a(f"v_mov_b32 v{vIDX}, 0x44444444\nv_mov_b32 v1, 0xeeeeeeee\nv_cndmask_b32 v{vIDX}, v{vIDX}, v1, s[{sB}:{sB+1}]")
    PL = [(5, 1, 1024), (4, 1, 512), (0, 4, 16)]
    def pchunk(): a(f"s_lshr_b32 s{T1}, s{T0}, 1\ns_lshl_b32 s{T1}, s{T1}, 14\ns_and_b32 s{T2}, s{T0}, 1\ns_lshl_b32 s{T2}, s{T2}, 12\ns_add_u32 s{T1}, s{T1}, s{T2}")
    for ph in range(10):
        mfrag(ph); a(f"s_lshl_b32 s{T2}, s{T0}, 10\nv_lshl_add_u32 v{vLM+ph}, v{LANE}, 4, s{T2}")
        if ph < 2: pchunk(); vexpr(a, vPld + ph, PL, [(T1, 1)])
    a(f"s_lshr_b32 s{T0}, s{S_W}, 1\ns_add_u32 s{T0}, s{T0}, s{sF0}\ns_add_u32 s{T0}, s{T0}, 8"); smod(a, T0, 10)
    a(f"s_and_b32 s{T1}, s{S_W}, 1\ns_lshl_b32 s{T1}, s{T1}, 3\ns_lshl_b32 s{T2}, s{T0}, 10\ns_add_u32 s{T2}, s{T2}, s{T1}\nv_lshl_add_u32 v{vLM+10}, v{LANE}, 4, s{T2}")
    pchunk(); a(f"s_and_b32 s{T2}, s{S_W}, 1"); vexpr(a, vPld + 2, PL, [(T1, 1), (T2, 256)])
    for ph in range(6):
        ofrag(ph); a(f"s_mov_b32 s{T1}, s{T0}"); vexpr(a, vOld + ph, LIN, [(sX, 24576), (T1, 1024), RO_O])
    vexpr(a, vZw, [(0, 4, ZP), (4, 2, 8)], [(S_W, 16 * ZP), LZ])
    vexpr(a, vVw, [(0, 6, 4)], [(S_W, 256), LV])
    vexpr(a, vVMst, [(0, 6, 4)], [(sH, 3072), (sT, 1024), (S_W, 256), VM])
    vexpr(a, vFw, LIN, [(S_W, 1024), LF])
    for r in range(4):
        a(f"v_bfe_u32 v1, v{LANE}, 1, 2\nv_cmp_eq_u32 vcc, {r}, v1\nv_and_b32 v1, 1, v{LANE}\nv_lshlrev_b32 v1, 4, v1\nv_mov_b32 v{vT}, 0x3f80\nv_lshlrev_b32 v1, v1, v{vT}\nv_cndmask_b32 v{vID+r}, 0, v1, vcc")
        a(f"v_lshrrev_b32 v1, 1, v{LANE}\nv_xor_b32 v1, v1, v{LANE}\nv_and_b32 v1, 8, v1\nv_cmp_eq_u32 vcc, 0, v1\ns_nop 1\nv_cndmask_b32 v{vID+r}, 0, v{vID+r}, vcc")
    for i in range(4): a(f"v_mov_b32 v{vNEG+i}, -1")
    for i in range(20): a(f"v_mov_b32 v{vQ+i}, 0")
    a(f"s_mov_b32 s{sC}, {hex(f2u(192 ** -0.5 * math.log2(math.e)))}\nv_mov_b32 v{vHint}, 0")
    saddr(a, sI0, [RI]); saddr(a, sP1, [RPL]); saddr(a, sP0, [(S_POL, 8192), RPL])
    a(f"s_mov_b32 s{sS}, 0\ns_add_u32 s{sI1}, s{sI0}, {RI_STRIDE}\ns_add_u32 s{sI2}, s{sI1}, {RI_STRIDE}\ns_add_u32 s{sI3}, s{sI2}, {RI_STRIDE}")
    a(f"s_mov_b32 s{sKV}, 0\ns_mov_b32 s{sKM}, 0\ns_mov_b32 s{S_TO}, {TIMEOUT}\nv_mov_b32 v{vSEQ}, 1\ns_mov_b32 s{sSEQ}, 1\ns_mov_b32 s{sRDY}, 0\ns_mov_b32 s50, 0")
    fo = HINT; fs = HINT + 0x8000
    XL = [(S_POL, 8192), (sTK, 256), XHINT]
    saddr(a, T0, XL + [(sX, XH_STRIDE)]); a(f"s_add_u32 s{sXB}, s{S_PTR}, s{T0}\ns_addc_u32 s{sXB+1}, s{S_PTR+1}, 0")
    saddr(a, T0, [(sH, 128), F_PROJ]); a(f"s_add_u32 s{sFB}, s{S_PTR}, s{T0}\ns_addc_u32 s{sFB+1}, s{S_PTR+1}, 0")
    for k in range(4): a(f"s_mov_b32 s{sXV+k}, 0")
    if stamps:
        a(f"v_cmp_gt_u32 vcc, 8, v{LANE}\nv_mov_b32 v{vSTI}, 32\ns_nop 0\nv_cndmask_b32 v{vSTI}, 0, v{vSTI}, vcc")
        saddr(a, T0, [(S_W, 2048), LSTAMP]); a(f"v_lshl_add_u32 v{vSTD}, v{LANE}, 2, s{T0}\nv_mov_b32 v{vSTP}, {LSTAMP + 8192}\nv_cndmask_b32 v{vSTP}, v{vSTP}, v{vSTD}, vcc")
        a("s_mov_b32 s92, 0\ns_mov_b32 s93, 0\ns_mov_b32 s94, 0\ns_mov_b32 s95, 0")
    FAIL = c.lab("fail"); DONE = c.lab("done")
    def smf(d, r, w): a(f"v_smfmac_f32_16x16x64_bf16 {vr(d,4)}, {vr(r,4)}, {w}, v{vIDX}")
    def timeout(L): a(f"s_sub_u32 s{S_TO}, s{S_TO}, 1\ns_cmp_lg_u32 s{S_TO}, 0\ns_cbranch_scc1 {L}\ns_branch {FAIL}")
    def br_bad(R):
        a(f"v_max_u32 v{vCK}, v{vCK}, v{vCK+1}\nv_cmp_eq_u32 vcc, -1, v{vCK}")
        return lambda: (a(f"s_cbranch_vccnz {R}") if not nocheck else a("s_nop 0"))
    def acc_max(first, r):
        if first: a(f"v_max3_u32 v{vCK}, v{r}, v{r+1}, v{r+2}\nv_mov_b32 v{vCK+1}, v{r+3}")
        else: a(f"v_max3_u32 v{vCK}, v{vCK}, v{r}, v{r+1}\nv_max3_u32 v{vCK+1}, v{vCK+1}, v{r+2}, v{r+3}")
    cold = []
    def retry(R, L, accs, cnt):
        def rt():
            a(f"{R}:")
            if stamps: a(f"s_add_u32 s{cnt}, s{cnt}, 1")
            a("s_nop 7")
            for r in accs: a(f"v_mov_b32 v{r}, 0")
            timeout(L)
        cold.append(rt)
    sMK = 50
    def deferred(units, cnt, tail_nop):
        FIX = c.lab("fix"); BACK = c.lab("back")
        def main(u):
            loads, check, process = units[u]
            B = c.lab("bad"); S = c.lab("skip")
            check()
            if not nocheck: a(f"s_cbranch_vccnz {B}")
            else: a("s_nop 0")
            process(); a(f"{S}:")
            def bad():
                a(f"{B}:"); loads(); a(f"s_bitset1_b32 s{sMK}, {u}")
                if stamps: a(f"s_add_u32 s{cnt}, s{cnt}, 1")
                a(f"s_branch {S}")
            cold.append(bad)
        def end():
            a(f"s_cmp_lg_u32 s{sMK}, 0\ns_cbranch_scc1 {FIX}\n{BACK}:")
            def fix():
                a(f"{FIX}:\ns_waitcnt vmcnt(0)")
                for u, (loads, check, process) in enumerate(units):
                    N = c.lab("n"); B = c.lab("b")
                    a(f"s_bitcmp1_b32 s{sMK}, {u}\ns_cbranch_scc0 {N}")
                    check(True); a(f"s_cbranch_vccnz {B}"); process(); a(f"s_bitset0_b32 s{sMK}, {u}\ns_branch {N}\n{B}:"); loads(); a(f"{N}:")
                nop(a, tail_nop)
                a(f"s_cmp_eq_u32 s{sMK}, 0\ns_cbranch_scc1 {BACK}")
                if stamps: a(f"s_add_u32 s{cnt+1}, s{cnt+1}, 0x10000")
                timeout(FIX)
            cold.append(fix)
        return main, end
    def spin(vaddr, mask, vt):
        L = c.lab("sp"); D = c.lab("sd")
        a(f"s_mov_b64 exec, {mask}\n{L}:")
        for k in range(opt.get('hunroll', 8)):
            a(f"v_cmp_gt_u32 vcc, v{vSEQ}, v{vt}\ns_cbranch_vccz {D}")
            a(f"buffer_load_dword v{vt}, v{vaddr}, {WS}, 0 offen sc1")
        a("s_waitcnt vmcnt(40)")
        timeout(L)
        a(f"{D}:\ns_mov_b64 exec, -1")
    LW = [c.lab(f"w{w}") for w in range(4)]
    for w in range(1, 4): a(f"s_cmp_eq_u32 s{S_W}, {w}\ns_cbranch_scc1 {LW[w]}")
    vS = vT + 4
    lgap = opt.get("lgap", 8)
    for w in range(4):
        a(f"{LW[w]}:")
        vZ = vVM
        vKVld, vSst, vSw, vZr, vFL = vA, vA + 1, vA + 2, vA + 3, vA + 4
        SMM = [(0, 3, 32), (4, 1, 16), (5, 1, 8), (3, 1, 4)]
        nkv = [0, 2, 2, 4][w]
        if w in (1, 2):
            vexpr(a, vKVld, LIN, [(sH, 12288), (sT, 2048), KF + (w - 1) * 6144])
            vexpr(a, vSst, [(4, 2, 256), (0, 3, 16)], [(sH, 4096), (sT, 1024), RS_O + (w - 1) * 128]); keepbit(a, vSst, 3, 0)
            vexpr(a, vSw, [(4, 2, 256), (0, 3, 16), (3, 1, 2048)], [LS + (w - 1) * 128])
        if w < 3: vexpr(a, vZr, [(4, 2, 8 * ZP), (2, 2, ZP), (0, 2, 8)], [LZ])
        if w == 0:
            vPst = vA + 5
            vexpr(a, vSst, [(4, 1, 16), (0, 3, 32)], [(sH, 4096), (sT, 256), RS_O + 3072]); keepbit(a, vSst, 3, 0); keepbit(a, vSst, 5, 1)
            vexpr(a, vSw, [(4, 1, 16), (0, 3, 32), (3, 1, 2048), (5, 1, 256)], [LS + 1024])
            vexpr(a, vFL, [(0, 6, 4)], [(sX, 24 * 128), (sTK, 128), fo])
            a(f"s_lshl_b32 s{T1}, 1, s{sTK}\ns_andn2_b32 s{sFM}, 0xffffff, s{T1}\ns_mov_b32 s{sFM+1}, 0")
            a(f"s_lshr_b32 s{T0}, s{sTK}, 1"); pchunk(); a(f"s_and_b32 s{T2}, s{sTK}, 1")
            vexpr(a, vPst, [(5, 1, 256), (0, 4, 16), (4, 1, 8)], [(T1, 1), (sX, 1024), (T2, 512)])
        if w == 1:
            vSclr, vOclr = vA + 5, vA + 6
            vexpr(a, vSclr, LIN, [(sH, 4096), (sT, 1024), RS_O]); vexpr(a, vOclr, LIN, [(sH, 3072), (sT, 1024), RO_O])
        if w == 2:
            vKMst, vFX, vSc2, vPRG = vA + 5, vA + 6, vA + 7, vA + 8
            vexpr(a, vSc2, [(0, 6, 4)], [(sH, 4096), (sT, 256), RS_O + 3072])
            vexpr(a, vPRG, [(0, 6, 4)], [(sH, 128), (sT, 4), F_CHAIN]); keep(a, vPRG, f"v_cmp_gt_u32 vcc, 1, v{LANE}")
            vexpr(a, vKMst, [(0, 3, 64), (4, 2, 16)], [(sH, 3072), (sT, 1024), KM]); keepbit(a, vKMst, 3, 1)
            a(f"v_add_u32 v{vFX}, s{sX}, v{LANE}\nv_add_u32 v{vFX}, 1, v{vFX}\nv_and_b32 v{vFX}, 3, v{vFX}\nv_mul_u32_u24 v{vFX}, {XH_STRIDE}, v{vFX}\nv_lshl_add_u32 v{vFX}, v{LANE}, 6, v{vFX}")
            saddr(a, T0, XL); a(f"v_add_u32 v{vFX}, s{T0}, v{vFX}"); keep(a, vFX, f"v_cmp_gt_u32 vcc, 3, v{LANE}")
            a(f"v_add_u32 v{vFL}, s{sT}, v{LANE}\nv_add_u32 v{vFL}, 1, v{vFL}\nv_subrev_u32 v1, 3, v{vFL}\nv_min_u32 v{vFL}, v{vFL}, v1\nv_lshlrev_b32 v{vFL}, 7, v{vFL}\nv_lshl_add_u32 v{vFL}, v{LANE}, 2, v{vFL}")
            saddr(a, T0, [(sH, 384), fs]); a(f"v_add_u32 v{vFL}, s{T0}, v{vFL}"); keep(a, vFL, f"v_cmp_gt_u32 vcc, 2, v{LANE}")
        if w == 3:
            vSx0, vSx1, vSm0, vSm1, vSxL, vSmL, vVr, vFS = vA + 1, vA + 2, vA + 3, vA + 5, vA + 6, vA + 7, vA + 8, vA + 9
            vexpr(a, vKVld, LIN, [(sH, 12288), (sT, 4096), VT])
            for k, (vx, vm_) in enumerate(((vSx0, vSm0), (vSx1, vSm1))):
                a(f"s_add_u32 s{T2}, s{sT}, {k+1}"); smod(a, T2, 3)
                vexpr(a, vx, LIN, [(sH, 4096), (T2, 1024), RS_O])
                vexpr(a, vm_, SMM, [(sH, 4096), (T2, 256), RS_O + 3072])
            vexpr(a, vSxL, LIN, [LS]); vexpr(a, vSmL, SMM, [LS + 1280]); vexpr(a, vVr, [(0, 6, 4)], [LV])
            vexpr(a, vFS, [(0, 1, 4)], [(sH, 384), (sT, 128), fs])
            a(f"s_add_u32 s{T2}, s{sTK}, 1\nv_add_u32 v{vFL}, s{T2}, v{LANE}\nv_subrev_u32 v1, 24, v{vFL}\nv_min_u32 v{vFL}, v{vFL}, v1\nv_lshlrev_b32 v{vFL}, 7, v{vFL}")
            saddr(a, T0, [(sX, 24 * 128), (sTK, 4), fo]); a(f"v_add_u32 v{vFL}, s{T0}, v{vFL}")
            keep(a, vFL, f"v_cmp_gt_u32 vcc, 23, v{LANE}")
            for i in range(4): a(f"v_mov_b32 v{vVM+2*i+1}, 0")
            a(f"v_mov_b32 v{vG+1}, 0")
        kvl = [f"buffer_load_dwordx4 {vr(vKV+4*i,4)}, v{vKVld}, {WS}, s{sKV} offen offset:{1024*i} sc1" for i in range(nkv)]
        def kv_ready():
            if not nkv: return
            R = c.lab("kvw"); B = c.lab("kvb")
            a(f"s_cmp_le_u32 s{sRDY}, s{sS}\ns_cbranch_scc1 {R}\n{B}:")
            def slow():
                a(f"{R}:\ns_load_dwordx4 s[{sRV}:{sRV+3}], s[{sFB}:{sFB+1}], 0 glc\ns_waitcnt lgkmcnt(0)\ns_min_u32 s{sRDY}, s{sRV}, s{sRV+1}\ns_min_u32 s{sRDY}, s{sRDY}, s{sRV+2}\ns_cmp_gt_u32 s{sRDY}, s{sS}\ns_cbranch_scc1 {B}")
                timeout(R)
            cold.append(slow)
        if w == 0:
            vexpr(a, vT, [(4, 1, 4 * 1280), (5, 1, 32), (0, 4, 2)], [(sFJ, 64), (sX, 0x100000)])
            for r in range(4): a(f"buffer_load_ushort v{vT+2+r}, v{vT}, s[{S_MEM}:{S_MEM+3}], 0 offen offset:{1280*r}")
            a(f"s_waitcnt vmcnt(0)\nv_lshl_or_b32 v{vT}, v{vT+3}, 16, v{vT+2}\nv_lshl_or_b32 v{vT+1}, v{vT+5}, 16, v{vT+4}")
            a(f"buffer_store_dwordx2 {vr(vT,2)}, v{vPst}, {WS}, s{sP0} offen sc1")
        kv_ready()
        if w in (1, 2):
            for l in kvl: a(l)
        rtstamp(a, 3); cystamp(a, 5)
        LOOP = c.lab("loop"); R = c.lab("r")
        a(f"s_branch {LOOP}\n.p2align 6\n{LOOP}:")
        offs = [0, 2048, 256, 2304]
        pl = lambda k: a(f"buffer_load_dwordx4 {vr(vRW+4*k,4)}, v{vPld + (k >> 2)}, {WS}, s{sP0} offen offset:{offs[k & 3]} sc1")
        for k in range(10):
            pl(k)
            if k < 9: nop(a, opt.get("pgap", 6))
        def punit(rnd):
            ks = list(range(4 * rnd, min(4 * rnd + 4, 10)))
            def check(landed=False):
                for k in ks:
                    if not landed: a(f"s_waitcnt vmcnt({9-k})")
                    d = vr(vD + 4 * ((k >> 1) & 1), 4)
                    a(f"v_mfma_f32_16x16x32_bf16 {d}, {vr(vRW+4*k,4)}, {vr(vID,4)}, {'0' if k % 2 == 0 else d}")
                    acc_max(k == ks[0], vRW + 4 * k)
                a(f"v_max_u32 v{vCK}, v{vCK}, v{vCK+1}\nv_cmp_eq_u32 vcc, -1, v{vCK}")
            def process():
                nop(a, 3)
                if rnd < 2:
                    for i in range(4): a(f"v_cvt_pk_bf16_f32 v{vFR+4*rnd+i}, v{vD+2*i}, v{vD+2*i+1}")
                    a(f"ds_write_b128 v{vLM+rnd}, {vr(vFR+4*rnd,4)}\ns_nop 0")
                    smf(vQ, vFR + 4 * rnd, WQ(rnd)); smf(vK, vFR + 4 * rnd, WK(rnd)); smf(vV, vFR + 4 * rnd, WV(rnd))
                else:
                    for i in range(2): a(f"v_cvt_pk_bf16_f32 v{vT+i}, v{vD+2*i}, v{vD+2*i+1}")
                    a(f"ds_write_b64 v{vLM+10}, {vr(vT,2)}")
            return (lambda: [pl(k) for k in ks], check, process)
        main, end = deferred([punit(r) for r in range(3)], 92, 0)
        for r in range(3): main(r)
        end()
        stamp(0)
        a("s_waitcnt lgkmcnt(0)\ns_barrier")
        RA = opt.get("ra", 3)
        rd = lambda ph: a(f"ds_read_b128 {vr(vFR+4*ph,4)}, v{vLM+ph}")
        for ph in range(2, 2 + RA): rd(ph)
        side = list(kvl) if w == 3 else []
        if w == 2: side = [f"v_add_u32 v{vT+2}, -1, v{vSEQ}", f"buffer_store_dword v{vT+2}, v{vPRG}, {WS}, 0 offen {isc}"]
        shint = f"buffer_store_dword v{vSEQ}, v{vFL}, {WS}, 0 offen {isc}"
        for ph in range(2, 10):
            a(f"s_waitcnt lgkmcnt({min(RA - 1, 9 - ph)})")
            smf(vQ, vFR + 4 * ph, WQ(ph))
            if ph + RA < 10: rd(ph + RA)
            smf(vK, vFR + 4 * ph, WK(ph))
            if side: a(side.pop(0))
            if w == 2 and sflag == ph: a(shint)
        V = lambda ph: smf(vV, vFR + 4 * ph, WV(ph))
        V(2)
        nop(a, 7)
        for r in range(4): a(f"v_permlane32_swap_b32 v{vQ+r}, v{vK+r}")
        for r in range(4): a(f"v_add_f32 v{vQ+r}, v{vQ+r}, v{vK+r}")
        a(f"v_cvt_pk_bf16_f32 v{vT}, v{vQ}, v{vQ+1}\nv_cvt_pk_bf16_f32 v{vT+1}, v{vQ+2}, v{vQ+3}")
        a(f"ds_write_b64 v{vZw}, {vr(vT,2)}")
        if w == 2 and sflag == 10: a(shint)
        for ph in range(3, 6): V(ph)
        a("s_waitcnt lgkmcnt(0)\ns_barrier")
        stamp(1)
        def vtail(pre=8):
            nop(a, pre)
            a(f"v_permlane32_swap_b32 v{vV}, v{vV+2}\nv_permlane32_swap_b32 v{vV+1}, v{vV+3}")
            a(f"v_add_f32 v{vV}, v{vV}, v{vV+2}\nv_add_f32 v{vV+1}, v{vV+1}, v{vV+3}")
            a(f"v_cvt_pk_bf16_f32 v{vT+8}, v{vV}, v{vV+1}")
            if w >= 2: a(f"v_cvt_pk_bf16_f32 v{vT+9}, v{vV+1}, v{vV}")
            a(f"ds_write_b32 v{vVw}, v{vT+(9 if w >= 2 else 8)}")
        def kmvm(w=w):
            a(f"buffer_store_dword v{vT+8}, v{vVMst}, {WS}, s{sKM} offen {isc}")
            if w == 2:
                for u in range(2): a(f"buffer_store_dwordx4 {vr(vZ+4*u,4)}, v{vKMst}, {WS}, s{sKM} offen offset:{512*u} {isc}")
        LAST = c.lab("last")
        def last(LAST=LAST, kmvm=kmvm, w=w):
            a(f"{LAST}:"); kmvm(); a("s_waitcnt vmcnt(0)\ns_barrier")
            if w == 2: a(f"buffer_store_dword v{vSEQ}, v{vPRG}, {WS}, 0 offen {isc}")
            a(f"s_branch {DONE}")
        cold.append(last)
        vOF = vFR + 16
        if w < 3:
            for u in range(2):
                for q in range(2): a(f"ds_read_b64_tr_b16 {vr(vZ+4*u+2*q,2)}, v{vZr} offset:{(u*32+q*4)*ZP}")
            if w == 2 and sflag == 11: a(shint)
            for ph in range(6, 8): V(ph)
            A0, A1 = (vKV, vKV + 4) if w > 0 else (vZ, vZ + 4)
            a("s_waitcnt lgkmcnt(2)")
            a(f"v_mfma_f32_16x16x32_bf16 {vr(vS,4)}, {vr(A0,4)}, {vr(vZ,4)}, 0")
            a("s_waitcnt lgkmcnt(0)")
            a(f"v_mfma_f32_16x16x32_bf16 {vr(vS,4)}, {vr(A1,4)}, {vr(vZ+4,4)}, {vr(vS,4)}")
            nop(a, 8)
            a(f"buffer_store_dwordx4 {vr(vS,4)}, v{vSst}, {WS}, s{sI0} offen {isc}")
            stamp(2)
            a(f"ds_write_b128 v{vSw}, {vr(vS,4)}")
            for ph in range(8, 10): V(ph)
            for i in range(8): a(f"v_mov_b32 v{vQ+i}, 0")
            a("s_waitcnt lgkmcnt(0)\ns_barrier")
            vtail(0)
            a(f"s_cmp_eq_u32 s{sS}, {NSEG-1}\ns_cbranch_scc1 {LAST}")
            a("s_waitcnt lgkmcnt(0)\ns_barrier")
            for i in range(4): a(f"v_mov_b32 v{vV+i}, 0")
            kmvm()
            if w == 1: a(f"buffer_store_dwordx4 {vr(vNEG,4)}, v{vSclr}, {WS}, s{sI2} offen {isc}\nbuffer_store_dwordx4 {vr(vNEG,4)}, v{vOclr}, {WS}, s{sI2} offen {isc}")
            if w == 2: a(f"buffer_store_dword v{vNEG}, v{vSc2}, {WS}, s{sI2} offen {isc}")
            if w == 0 and oflag is not None:
                nop(a, opt.get("ospin0", 0)); spin(vFL, f"s[{sFM}:{sFM+1}]", vHint)
        else:
            hl = f"buffer_load_dword v{vHint}, v{vFS}, {WS}, 0 offen sc1" if sflag is not None else "s_nop 0"
            for ph in range(6, 10): V(ph); (a(hl) if ph & 1 else None)
            X = vFR; MMr = vFR + 12
            def sload():
                a(f"buffer_load_dwordx4 {vr(X,4)}, v{vSx0}, {WS}, s{sI0} offen sc1\nbuffer_load_dwordx4 {vr(X+4,4)}, v{vSx1}, {WS}, s{sI0} offen sc1")
                a(f"buffer_load_dword v{MMr}, v{vSm0}, {WS}, s{sI0} offen sc1\nbuffer_load_dword v{MMr+1}, v{vSm1}, {WS}, s{sI0} offen sc1")
            def hint_at(k):
                if oflag == k: a(f"buffer_store_dword v{vSEQ}, v{vFL}, {WS}, 0 offen {isc}")
                return int(oflag == k)
            nop(a, 6); a(hl); vtail(0); a(hl)
            if sflag is not None: spin(vFS, 3, vHint)
            a(f"s_cmp_eq_u32 s{sS}, {NSEG-1}\ns_barrier\ns_cbranch_scc1 {LAST}")
            nop(a, opt.get("preS", 0))
            L = c.lab("poll"); R = c.lab("sr")
            sload()
            a(f"ds_read_b128 {vr(X+8,4)}, v{vSxL}\nds_read_b32 v{MMr+2}, v{vSmL}")
            a("s_waitcnt lgkmcnt(0)\ns_barrier")
            for i in range(4): a(f"ds_read_b32 v{vVM+2*i}, v{vVr} offset:{256*i}")
            a("s_waitcnt vmcnt(4)")
            for t_ in (2, 3): a(f"v_swap_b32 v{vKV+4*t_}, v{vKV+4*t_+2}\nv_swap_b32 v{vKV+4*t_+1}, v{vKV+4*t_+3}")
            a(f"{L}:\ns_waitcnt vmcnt(0)")
            s0 = vFR + 20; p0 = vFR + 26; Fq = vFR + 32; m = vT; t = vT + 1; m2 = vT + 2; t2 = vT + 3
            a(f"v_max3_u32 v{vCK}, v{X}, v{X+1}, v{X+2}\nv_max3_u32 v{vCK+1}, v{X+3}, v{X+4}, v{X+5}")
            a(f"v_max3_u32 v{vCK}, v{vCK}, v{X+6}, v{X+7}\nv_max3_u32 v{vCK+1}, v{vCK+1}, v{MMr}, v{MMr+1}")
            a(f"v_pk_add_f32 {vr(s0,2)}, {vr(X+8,2)}, {vr(X,2)}\nv_max_u32 v{vCK}, v{vCK}, v{vCK+1}")
            a(f"v_pk_add_f32 {vr(s0+2,2)}, {vr(X+10,2)}, {vr(X+2,2)}\nv_cmp_eq_u32 vcc, -1, v{vCK}\nv_add_f32 v{s0+4}, v{MMr+2}, v{MMr}")
            a(f"v_pk_add_f32 {vr(s0,2)}, {vr(s0,2)}, {vr(X+4,2)}\nv_pk_add_f32 {vr(s0+2,2)}, {vr(s0+2,2)}, {vr(X+6,2)}\nv_add_f32 v{s0+4}, v{s0+4}, v{MMr+1}")
            if not nocheck: a(f"s_cbranch_vccnz {R}")
            def srt(L=L, R=R, sload=sload):
                a(f"{R}:"); sload()
                if stamps: a("s_add_u32 s93, s93, 1")
                timeout(L)
            cold.append(srt)
            stamp(2)
            ROR = "row_ror:8 row_mask:0xf bank_mask:0xf"
            a(f"v_max3_f32 v{m}, v{s0}, v{s0+1}, v{s0+4}\nv_max3_f32 v{m}, v{m}, v{s0+2}, v{s0+3}")
            nop(a, 2 - hint_at(0))
            a(f"v_max_f32_dpp v{m2}, v{m}, v{m} {ROR}\nv_max_f32_dpp v{t2}, v{m}, v{m} {ROR}\ns_nop 1")
            a(f"v_permlane16_swap_b32 v{t2}, v{m2}\nv_max_f32 v{m}, v{m2}, v{t2}\nv_max_f32 v{t}, v{m2}, v{t2}")
            nop(a, 2 - hint_at(1))
            a(f"v_permlane32_swap_b32 v{t}, v{m}\nv_max_f32 v{m}, v{m}, v{t}")
            a(f"v_mul_f32 v{m}, s{sC}, v{m}")
            for r in (0, 1, 2, 3, 4): a(f"v_fma_f32 v{p0+r}, v{s0+r}, s{sC}, -v{m}")
            hint_at(1.3)
            for r in (0, 1, 2): a(f"v_exp_f32 v{p0+r}, v{p0+r}")
            a(f"v_cvt_pk_bf16_f32 v{Fq}, v{p0}, v{p0+1}")
            a(f"v_exp_f32 v{p0+3}, v{p0+3}\nv_exp_f32 v{p0+4}, v{p0+4}")
            a(f"v_cvt_pk_bf16_f32 v{Fq+1}, v{p0+2}, v{p0+3}")
            hint_at(1.6)
            a(f"v_mov_b32_dpp v{Fq+2}, v{Fq} {ROR}\nv_mov_b32_dpp v{t2}, v{p0+4} {ROR}\nv_mov_b32_dpp v{Fq+3}, v{Fq+1} {ROR}")
            a(f"v_add_f32 v{m}, v{p0}, v{p0+1}\nv_cvt_pk_bf16_f32 v{vG}, v{p0+4}, v{t2}")
            Tt = [vFR, vFR + 4, vFR + 8, vFR + 12]
            def pvx(i): a(f"v_mfma_f32_16x16x32_bf16 {vr(Tt[i],4)}, {vr(vKV+4*i,4)}, {vr(Fq,4)}, 0")
            def pvm(i): a(f"v_mfma_f32_16x16x16_bf16 {vr(Tt[i],4)}, {vr(vVM+2*i,2)}, {vr(vG,2)}, {vr(Tt[i],4)}")
            pvx(0)
            a(f"v_add_f32 v{t}, v{p0+2}, v{p0+3}\nv_add_f32 v{m}, v{m}, v{p0+4}")
            pvx(2)
            a(f"v_add_f32 v{m}, v{m}, v{t}")
            hint_at(2); a("s_waitcnt lgkmcnt(0)")
            pvm(0)
            a(f"v_add_f32_dpp v{m2}, v{m}, v{m} {ROR}\nv_add_f32_dpp v{t2}, v{m}, v{m} {ROR}")
            pvm(2)
            if not hint_at(3): a("s_nop 0")
            a(f"v_permlane16_swap_b32 v{t2}, v{m2}")
            pvx(1)
            a(f"v_add_f32 v{m}, v{m2}, v{t2}\nv_add_f32 v{t}, v{m2}, v{t2}")
            pvx(3)
            a(f"s_nop 0\nv_permlane32_swap_b32 v{t}, v{m}")
            pvm(1)
            a(f"v_add_f32 v{m}, v{m}, v{t}\nv_rcp_f32 v{m}, v{m}")
            pvm(3)
            U = vD
            for r in range(4): a(f"v_cndmask_b32 v{U+r}, v{Tt[0]+r}, v{Tt[2]+r}, s[{sB}:{sB+1}]")
            for r in range(4): a(f"v_mul_f32 v{U+r}, v{U+r}, v{m}")
            for r in range(4): a(f"v_cndmask_b32 v{U+4+r}, v{Tt[1]+r}, v{Tt[3]+r}, s[{sB}:{sB+1}]")
            for r in range(4): a(f"v_mul_f32 v{U+4+r}, v{U+4+r}, v{m}")
            for r in range(4): a(f"v_cvt_pk_bf16_f32 v{vOF+r}, v{U+2*r}, v{U+2*r+1}")
            a(f"buffer_store_dwordx4 {vr(vOF,4)}, v{vOld}, {WS}, s{sI0} offen {isc}")
        a("s_barrier")
        stamp(3)
        nop(a, opt.get("preO", 0))
        ph0 = 1 if w == 3 else 0
        LO = c.lab("g"); RO = c.lab("r"); a(f"{LO}:")
        ol = lambda ph: a(f"buffer_load_dwordx4 {vr(vOF+4*ph,4)}, v{vOld+ph}, {WS}, s{sI0} offen sc1")
        for ph in range(ph0, 6):
            ol(ph)
            if ph < 5: nop(a, lgap)
        xh = 0
        for ph in range(6):
            if ph >= ph0: a(f"s_waitcnt vmcnt({5-ph+xh})")
            smf(vF, vOF + 4 * ph, WO(ph, 0)); smf(vF + 4, vOF + 4 * ph, WO(ph, 1))
            if ph >= ph0: acc_max(ph == ph0, vOF + 4 * ph)
            if w == 2 and pflag == ph and ph < 5: a(f"buffer_store_dword v{vSEQ}, v{vFX}, {WS}, 0 offen sc1"); xh = 1
        br = br_bad(RO)
        if w == 2 and pflag == 5: a(f"buffer_store_dword v{vSEQ}, v{vFX}, {WS}, 0 offen sc1")
        a(f"s_add_u32 s{T0}, s{sS}, 1\ns_lshr_b32 s{T1}, s{T0}, 4\ns_xor_b32 s{T1}, s{T1}, s{S_POL}")
        br(); retry(RO, LO, range(vF, vF + 8), 94)
        stamp(4)
        for r in range(4): a(f"v_permlane32_swap_b32 v{vF+r}, v{vF+4+r}")
        for r in range(4): a(f"v_add_f32 v{vS+r}, v{vF+r}, v{vF+4+r}")
        if w: a(f"ds_write_b128 v{vFw}, {vr(vS,4)}")
        if w == 2 and pflag == 6: a(f"buffer_store_dword v{vSEQ}, v{vFX}, {WS}, 0 offen sc1")
        a(f"s_and_b32 s{T1}, s{T1}, 1\ns_lshl_b32 s{T1}, s{T1}, 13\ns_mov_b32 s{sS}, s{T0}\ns_lshl_b32 s{T0}, s{T0}, 17\ns_add_u32 s{T0}, s{T0}, s{T1}\ns_add_u32 s{sP0}, s{T0}, s{sP1}")
        a(f"s_add_u32 s{sKV}, s{sKV}, {32*12288}\ns_mov_b32 s{S_TO}, {TIMEOUT}")
        a("s_waitcnt lgkmcnt(0)\ns_barrier")
        xload = "\n".join(f"s_load_dword s{sXV+k}, s[{sXB}:{sXB+1}], {64*k} glc" for k in range(3))
        if w == 0:
            for p in range(3): a(f"ds_read_b128 {vr(vFR+4*p,4)}, v{vFw} offset:{1024*(p+1)}")
            for p in range(3):
                a(f"s_waitcnt lgkmcnt({2-p})\nv_pk_add_f32 {vr(vS,2)}, {vr(vS,2)}, {vr(vFR+4*p,2)}\nv_pk_add_f32 {vr(vS+2,2)}, {vr(vS+2,2)}, {vr(vFR+4*p+2,2)}")
            a(f"v_cvt_pk_bf16_f32 v{vT}, v{vS}, v{vS+1}\nv_cvt_pk_bf16_f32 v{vT+1}, v{vS+2}, v{vS+3}")
            a(f"buffer_store_dwordx2 {vr(vT,2)}, v{vPst}, {WS}, s{sP0} offen sc1")
            stamp(5)
        if w == 1 and pflag is not None: a(xload)
        for i in range(8): a(f"v_mov_b32 v{vF+i}, 0")
        if w == 3:
            kmvm()
            for i in range(12): a(f"v_mov_b32 v{vQ+i}, 0")
        a(f"s_mov_b32 s{T0}, s{sI0}\ns_mov_b32 s{sI0}, s{sI1}\ns_mov_b32 s{sI1}, s{sI2}\ns_mov_b32 s{sI2}, s{sI3}\ns_mov_b32 s{sI3}, s{T0}")
        a(f"s_add_u32 s{sKM}, s{sKM}, {32*3072}")
        kv_ready()
        if w in (1, 2):
            for l in kvl: a(l)
        if stamps and w != 1:
            nop(a, 8)
            for i in range(8): a(f"v_writelane_b32 v{vSTD}, s{ST+2*i}, {i}")
            a(f"ds_write_b32 v{vSTP}, v{vSTD}\nv_add_u32 v{vSTP}, v{vSTP}, v{vSTI}")
        if w == 1 and pflag is not None:
            L = c.lab("xs"); D = c.lab("xd")
            a(f"{L}:\n{xload}")
            for k in range(opt.get("xrep", 2)):
                a(f"s_min_u32 s{T0}, s{sXV}, s{sXV+1}\ns_min_u32 s{T0}, s{T0}, s{sXV+2}\ns_cmp_ge_u32 s{T0}, s{sSEQ}\ns_cbranch_scc1 {D}")
            a("s_waitcnt lgkmcnt(12)")
            timeout(L); a(f"{D}:")
        if w == 0: nop(a, opt.get("preP", 0))
        a(f"v_add_u32 v{vSEQ}, 1, v{vSEQ}\ns_add_u32 s{sSEQ}, s{sSEQ}, 1")
        a("s_barrier")
        stamp(7)
        a(f"s_branch {LOOP}")
        for f in cold: f()
        cold.clear()
    a(f"{FAIL}:")
    a(f"s_mov_b64 exec, 1\nv_mov_b32 v1, {ERR}\nv_mov_b32 v{vT}, 1\nbuffer_atomic_add v{vT}, v1, {WS}, 0 offen\ns_endpgm")
    a(f"{DONE}:")
    rtstamp(a, 4); cystamp(a, 6)
    if stamps:
        vexpr(a, vT, LIN, [(S_W, 2048), LSTAMP])
        a(f"ds_read_b128 {vr(vFR,4)}, v{vT}\nds_read_b128 {vr(vFR+4,4)}, v{vT} offset:1024")
        vexpr(a, vT, LIN, [(S_RANK, 4 * 4096), (S_W, 4096), (S_L, 0x400000), STAMP])
        a(f"s_waitcnt lgkmcnt(0)\nbuffer_store_dwordx4 {vr(vFR,4)}, v{vT}, {WS}, 0 offen\nbuffer_store_dwordx4 {vr(vFR+4,4)}, v{vT}, {WS}, 0 offen offset:1024")
        a(f"s_mov_b64 exec, 1")
        for i in range(4): a(f"v_mov_b32 v{vFR+8+i}, s{92+i}")
        a(f"buffer_store_dwordx4 {vr(vFR+8,4)}, v{vT}, {WS}, 0 offen offset:4080\ns_mov_b64 exec, -1")
    mixer(a, AGAIN)
```

```python
WS_SIZE = 268435456
class PerLayer(int):
    def __new__(cls, v, stride): o = int.__new__(cls, v); o.stride = stride; return o
    def __add__(self, k): return PerLayer(int(self) + k, self.stride)
    __radd__ = __add__
FLG   = PerLayer(0, 0x20000)
F_PROJ, F_CHAIN, F_ATT, F_O, F_FIN, F_U = (FLG + k * 4096 for k in range(6))
F_B2, F_HF = 0x8000, 0xC000
HINT  = PerLayer(0x10000, 0x20000)
CTL_END = 0x40000
ERR   = 0x40000
MBX   = 0x48000
RI    = PerLayer(0x400000, 0x100000)
RI_STRIDE = 0x40000
RS_O, RO_O = 0, 0x20000
RING_END = int(RI) + 8 * RI_STRIDE
HF    = 0x700000
X1    = 0xA00000
X2    = 0xD00000
H2    = 0x1000000
UU    = 0x1300000
OP    = 0x1600000
OP_STRIDE = 0x280000
KM    = 0x2000000
VM    = 0x2800000
KF    = 0x3000000
QF    = 0x5000000
VT    = 0x7000000
OF    = QF
STAMP = 0xC000000
RPF   = 0xD000000
RP_STRIDE = 0x20000
RPL = PerLayer(RPF, 64 * RP_STRIDE)
XHINT = PerLayer(RPF + 0x18000, 0x4000)
XH_STRIDE = RP_STRIDE
PROBE = RPF + 0x80000 + 0x18000
OOB   = 0x7ffffff0
W_BYTES = 640 * 6144 * 2
XB = 2048 * 640 * 2
```

```python
from asmlib import *
from layout import *
from chain import saddr, vexpr, keep, nop, f2u, T0, T1, T2, T3, LANE, S_W, S_WS, WS, S_PTR
import math
S_X = 12; S_A = 16; S_Bv = 20; S_O = 24

def common(a, name, nwg):
    a(f"s_cmp_ge_u32 s2, {nwg}\ns_cbranch_scc1 {name}_end")
    a("s_load_dwordx2 s[4:5], s[0:1], 112")
    a(f"v_and_b32 v2, 63, v0\nv_lshrrev_b32 v1, 6, v0\ns_nop 0\nv_readfirstlane_b32 s{S_W}, v1")
def ws_sub(a, d, off, n):
    a(f"s_add_u32 s{d}, s4, {off}\ns_addc_u32 s{d+1}, s5, 0\ns_and_b32 s{d+1}, s{d+1}, 0xffff\ns_mov_b32 s{d+2}, {n}\ns_mov_b32 s{d+3}, 0x00020000")

def rowsum(a, v):
    for k in (1, 2, 4, 8): a(f"s_nop 1\nv_add_f32_dpp v{v}, v{v}, v{v} row_ror:{k} row_mask:0xf bank_mask:0xf")

def ln_body(a, variant, S_X=12, sc=''):
    vAd, vRaw, vX, vT = 3, 8, 128, 4
    a(f"s_lshl_b32 s34, s2, 3\ns_lshl_b32 s{T0}, s{S_W}, 2\ns_add_u32 s34, s34, s{T0}")
    vexpr(a, vAd, [(4, 2, 1280), (0, 4, 16)], [(34, 1280)])
    for i in range(5): a(f"buffer_load_dwordx4 {vr(vRaw+4*i,4)}, v{vAd}, s[{S_X}:{S_X+3}], 0 offen offset:{256*i}")
    if variant == "B":
        for p in range(4):
            a(f"s_mov_b32 s{T1}, {OP + p * OP_STRIDE}")
            for i in range(5): a(f"buffer_load_dwordx4 {vr(vRaw+20*(p+1)+4*i,4)}, v{vAd}, {WS}, s{T1} offen offset:{256*i}")
    a("s_mov_b32 s35, 0xffff0000")
    def unpack(src, dst, add):
        for j in range(20):
            if not add: a(f"v_lshlrev_b32 v{dst+2*j}, 16, v{src+j}\nv_and_b32 v{dst+2*j+1}, s35, v{src+j}")
            else: a(f"v_lshlrev_b32 v{vT}, 16, v{src+j}\nv_and_b32 v{vT+1}, s35, v{src+j}\nv_pk_add_f32 {vr(dst+2*j,2)}, {vr(dst+2*j,2)}, {vr(vT,2)}")
    if variant == "B":
        a("s_waitcnt vmcnt(15)"); unpack(vRaw + 20, vX, False)
        for p in range(1, 4): a(f"s_waitcnt vmcnt({15-5*p})"); unpack(vRaw + 20 * (p + 1), vX, True)
        unpack(vRaw, vX, True)
        for j in range(20): a(f"v_cvt_pk_bf16_f32 v{vRaw+j}, v{vX+2*j}, v{vX+2*j+1}")
        a(f"s_mov_b32 s{T1}, {X1}")
        for i in range(5): a(f"buffer_store_dwordx4 {vr(vRaw+4*i,4)}, v{vAd}, {WS}, s{T1} offen offset:{256*i}")
    else: a("s_waitcnt vmcnt(0)")
    unpack(vRaw, vX, False)
    a(f"v_pk_add_f32 {vr(vT,2)}, {vr(vX,2)}, {vr(vX+2,2)}")
    for j in range(2, 20): a(f"v_pk_add_f32 {vr(vT,2)}, {vr(vT,2)}, {vr(vX+2*j,2)}")
    a(f"v_add_f32 v{vT}, v{vT}, v{vT+1}"); rowsum(a, vT)
    a(f"v_mul_f32 v{vT}, {hex(f2u(1/640))}, v{vT}")
    for j in range(40): a(f"v_sub_f32 v{vX+j}, v{vX+j}, v{vT}")
    a(f"v_pk_mul_f32 {vr(vT,2)}, {vr(vX,2)}, {vr(vX,2)}")
    for j in range(1, 20): a(f"v_pk_fma_f32 {vr(vT,2)}, {vr(vX+2*j,2)}, {vr(vX+2*j,2)}, {vr(vT,2)}")
    a(f"v_add_f32 v{vT}, v{vT}, v{vT+1}"); rowsum(a, vT)
    a(f"v_mul_f32 v{vT}, {hex(f2u(1/640))}, v{vT}\nv_add_f32 v{vT+1}, {hex(f2u(1e-5))}, v{vT}\nv_rsq_f32 v{vT+1}, v{vT+1}\ns_nop 0")
    if variant == "B":
        a(f"v_mul_f32 v{vT}, v{vT}, v{vT+1}\nv_mul_f32 v{vT}, v{vT}, v{vT+1}\nv_add_f32 v{vT}, {hex(f2u(1e-5))}, v{vT}\nv_rsq_f32 v{vT}, v{vT}\ns_nop 0\nv_mul_f32 v{vT+1}, v{vT+1}, v{vT}")
    for j in range(40): a(f"v_mul_f32 v{vX+j}, v{vX+j}, v{vT+1}")
    vO = vRaw + 20
    for j in range(20): a(f"v_cvt_pk_bf16_f32 v{vO+j}, v{vX+2*j}, v{vX+2*j+1}")
    if variant == "B":
        a(f"s_mov_b32 s{T1}, {H2}")
        for i in range(5): a(f"buffer_store_dwordx4 {vr(vO+4*i,4)}, v{vAd}, {WS}, s{T1} offen offset:{256*i}")
    else:
        a(f"s_lshr_b32 s36, s2, 2\ns_and_b32 s37, s2, 3")
        vexpr(a, vAd, [(2, 2, 1024), (0, 2, 256), (4, 2, 16)], [(36, 40960), (S_W, 20480), (37, 64), HF])
        for i in range(5): a(f"s_mov_b32 s{T1}, {4096*i}\nbuffer_store_dwordx4 {vr(vO+4*i,4)}, v{vAd}, {WS}, s{T1} offen {sc}")

def tr_setup(a, vD, vR, rowbytes, terms, extra=0):
    for par in range(2):
        a(f"v_bfe_u32 v1, v{LANE}, 4, 1\nv_or_b32 v1, {2*par}, v1\nv_lshlrev_b32 v1, 1, v1\nv_and_b32 v3, 7, v{LANE}\nv_xor_b32 v3, v3, v1\nv_lshlrev_b32 v3, 4, v3")
        vexpr(a, vD + par, [(3, 3, rowbytes)], terms + [8 * par * rowbytes])
        a(f"v_add_u32 v{vD+par}, v{vD+par}, v3")
    if vR is None: return
    for i in range(4):
        a(f"v_bfe_u32 v1, v{LANE}, 3, 2\nv_xor_b32 v3, {i}, v1\nv_lshlrev_b32 v3, 5, v3")
        vexpr(a, vR + i, [(4, 2, 1024), (2, 2, 128), (0, 2, 8)], [(S_W, 40960)])
        a(f"v_add_u32 v{vR+i}, v{vR+i}, v3")
def tr_dma(a, srd_, vD, rowbytes, ks, lds, base=0):
    for k in range(4):
        a(f"s_add_u32 m0, s38, {lds + k*1024}\ns_mov_b32 s{T0}, {base + (32*ks + 16*(k>>1)) * rowbytes}")
        a(f"buffer_load_dwordx4 v{vD + (k&1)}, s[{srd_}:{srd_+3}], s{T0} offen lds")

def emit_mixer(a, opt):
    from chain import S_RANK, S_L, S_TO, TIMEOUT, S_X, rtstamp
    from workers import tmo
    sS, sD, S_A, S_Bv, S_O = 34, 35, 40, 44, 48
    a("la_mixer:\ns_load_dwordx4 s[52:55], s[0:1], 80\ns_load_dwordx2 s[56:57], s[0:1], 96\ns_waitcnt vmcnt(0) lgkmcnt(0)\ns_barrier")
    srd(a, S_A, 52, 2048 * 1536 * 2); srd(a, S_Bv, 54, 2048 * 2); srd(a, S_O, 56, XB); ws_sub(a, S_X, X2, XB)
    a(f"s_lshr_b32 s{sS}, s{S_RANK}, 3\ns_and_b32 s{sD}, s{S_RANK}, 7\ns_mul_i32 s38, s{S_W}, 40960")
    vDW, vU, vUr, vR, vG, vRd, vBi, vG2, vXr, vFW, vFU, vAcc = 4, 6, 7, 8, 12, 15, 18, 21, 24, 36, 52, 72
    P = 336; NW, NU, UB = 6, 3, 24576
    tr_setup(a, vDW, vR, 4096, [(S_W, 384 * 4096), (sS, 128)])
    q = []
    def wissue(ks): tr_dma(a, S_A, vDW, 4096, ks, (ks % NW) * 4096); q.extend([("W", ks)] * 4)
    def uissue(ks):
        for j in range(5):
            a(f"s_add_u32 m0, s38, {UB + (ks % NU) * 5120 + j * 1024}\ns_mov_b32 s{T0}, {j * 49152 + ks * 1024}\nbuffer_load_dwordx4 v{vU}, {WS}, s{T0} offen sc1 lds")
        q.extend([("U", ks)] * 5)
    for ks in range(NW): wissue(ks)
    vexpr(a, vU, [(0, 6, 16)], [(sD, 5 * 49152), (S_W, 12288), UU])
    vexpr(a, vUr, [(0, 6, 16)], [(S_W, 40960), UB])
    for k in range(3):
        a(f"v_add_u32 v1, {64*k}, v{LANE}\nv_min_u32 v1, 159, v1\nv_lshlrev_b32 v{vG2+k}, 4, v1\nv_mul_u32_u24 v3, 6554, v1\nv_lshrrev_b32 v3, 16, v3\nv_mul_u32_u24 v{vFW}, 10, v3\nv_sub_u32 v1, v1, v{vFW}")
        a(f"s_lshl_b32 s{T0}, s{S_W}, 4\nv_add_u32 v3, s{T0}, v3\nv_mul_u32_u24 v{vRd+k}, {P}, v3\nv_lshl_add_u32 v{vRd+k}, v1, 5, v{vRd+k}")
        a(f"s_lshl_b32 s{T0}, s{sS}, 6\nv_add_u32 v3, s{T0}, v3\nv_mul_u32_u24 v{vG+k}, 1280, v3\nv_lshl_add_u32 v{vG+k}, v1, 4, v{vG+k}\ns_mul_i32 s{T0}, s{sD}, 160\nv_add_u32 v{vG+k}, s{T0}, v{vG+k}")
        a(f"v_lshlrev_b32 v3, 1, v3\nbuffer_load_ushort v{vBi+k}, v3, s[{S_Bv}:{S_Bv+3}], 0 offen")
    vexpr(a, 3, [(0, 6, 4)], [(sD, 512), (S_W, 128), F_U])
    a(f"s_mov_b32 s{S_TO}, {TIMEOUT}\ns_mov_b64 exec, 7\nla_mw:\nbuffer_load_dword v1, v3, {WS}, 0 offen sc1\ns_waitcnt vmcnt(0)\nv_cmp_eq_u32 vcc, 0, v1\ns_cbranch_vccz la_mg\ns_sleep 2")
    tmo(a, "la_mw", "la_exit2")
    a("la_mg:\ns_mov_b64 exec, -1")
    rtstamp(a, 7)
    q.clear()
    for ks in range(NU): uissue(ks)
    a(f"s_mov_b32 s39, {X1}")
    for k in range(3): a(f"buffer_load_dwordx4 {vr(vXr+4*k,4)}, v{vG+k}, {WS}, s39 offen sc1"); q.append(("X", k))
    for ks in range(12):
        last = max(i for i, e in enumerate(q) if e in (("U", ks), ("W", ks)))
        a(f"s_waitcnt vmcnt({len(q) - 1 - last})")
        for i in range(4):
            for h in range(2): a(f"ds_read_b64_tr_b16 {vr(vFW+4*i+2*h,2)}, v{vR+i} offset:{(ks % NW)*4096 + h*512}")
        for j in range(5): a(f"ds_read_b128 {vr(vFU+4*j,4)}, v{vUr} offset:{(ks % NU)*5120 + j*1024}")
        for j in range(5):
            a(f"s_waitcnt lgkmcnt({4-j})")
            if j == 4:
                if ks + NU < 12: uissue(ks + NU)
                if ks + NW < 12: wissue(ks + NW)
            for i in range(4):
                d = vr(vAcc + 20 * i + 4 * j, 4)
                a(f"v_mfma_f32_16x16x32_bf16 {d}, {vr(vFU+4*j,4)}, {vr(vFW+4*i,4)}, {'0' if ks == 0 else d}")
    vW = 4
    vexpr(a, vW, [(0, 4, P), (4, 2, 16)], [(S_W, 64 * P)])
    saddr(a, T1, [(sD, 2048 * 160), (sS, 64 * 160), (S_W, 16 * 160)])
    a(f"s_cmp_eq_u32 s{S_L}, 0\ns_cselect_b64 vcc, -1, 0")
    for k in range(3): a(f"v_add_u32 v1, s{T1}, v{vG2+k}\nv_cndmask_b32 v{vG+k}, v{vG+k}, v1, vcc")
    keep(a, vG + 2, f"v_cmp_gt_u32 vcc, 32, v{LANE}")
    a("s_barrier")
    for i in range(4):
        for j in range(5): a(f"ds_write_b128 v{vW}, {vr(vAcc+20*i+4*j,4)} offset:{16*i*P + 64*j}")
        if i % 2: a("s_waitcnt lgkmcnt(0)")
    a("s_barrier\ns_mov_b32 s36, 0xffff0000")
    vX = 36
    for k in range(3):
        for p in range(4):
            for h in range(2): a(f"ds_read_b128 {vr(vX+32*k+8*p+4*h,4)}, v{vRd+k} offset:{p*64*P + 16*h}")
        a("s_waitcnt lgkmcnt(0)")
    for k in range(3):
        b = vX + 32 * k
        for i in range(0, 8, 2): a(f"v_pk_add_f32 {vr(b+i,2)}, {vr(b+i,2)}, {vr(b+8+i,2)}\nv_pk_add_f32 {vr(b+16+i,2)}, {vr(b+16+i,2)}, {vr(b+24+i,2)}")
        for i in range(4): a(f"v_lshlrev_b32 v{b+8+2*i}, 16, v{vXr+4*k+i}\nv_and_b32 v{b+9+2*i}, s36, v{vXr+4*k+i}")
        a(f"v_lshlrev_b32 v{vBi+k}, 16, v{vBi+k}")
        for i in range(0, 8, 2): a(f"v_pk_add_f32 {vr(b+i,2)}, {vr(b+i,2)}, {vr(b+16+i,2)}")
        for i in range(8): a(f"v_add_f32 v{b+i}, v{b+i}, v{vBi+k}")
        for i in range(0, 8, 2): a(f"v_pk_add_f32 {vr(b+i,2)}, {vr(b+i,2)}, {vr(b+8+i,2)}")
        for i in range(4): a(f"v_cvt_pk_bf16_f32 v{b+16+i}, v{b+2*i}, v{b+2*i+1}")
    a(f"s_cmp_eq_u32 s{S_L}, 0\ns_cbranch_scc1 la_mid")
    for k in range(3): a(f"buffer_store_dwordx4 {vr(vX+32*k+16,4)}, v{vG+k}, s[{S_O}:{S_O+3}], 0 offen")
    rtstamp(a, 8)
    a("la_exit2:\ns_endpgm\nla_mid:")
    for k in range(3): a(f"buffer_store_dwordx4 {vr(vX+32*k+16,4)}, v{vG+k}, s[{S_X}:{S_X+3}], 0 offen sc1")
    saddr(a, T1, [(sS, 512), (sD, 64), (S_W, 4), F_B2])
    a(f"s_lshr_b32 s37, s{sD}, 1"); vexpr(a, 3, [(0, 3, 64)], [(sS, 512), (37, 4), F_B2])
    vA, vM, vRaw, vY, m, t = 4, 7, 8, 20, 44, 45
    for i in range(3):
        a(f"v_and_b32 v1, 31, v{LANE}\nv_add_u32 v1, {32*i}, v1\nv_mul_u32_u24 v{vM}, 6554, v1\nv_lshrrev_b32 v{vM}, 16, v{vM}\nv_mul_u32_u24 v{vA+i}, 10, v{vM}\nv_sub_u32 v1, v1, v{vA+i}")
        a(f"v_mul_u32_u24 v{vA+i}, {2048*160}, v{vM}\nv_lshl_add_u32 v{vA+i}, v1, 4, v{vA+i}\nv_lshrrev_b32 v1, 5, v{LANE}\nv_mul_u32_u24 v1, 160, v1\nv_add_u32 v{vA+i}, v{vA+i}, v1")
    saddr(a, 39, [(S_RANK, 8 * 160), (S_W, 2 * 160)])
    a(f"s_mov_b32 s58, 0x0000ffff\ns_mov_b32 s59, s58\nv_mov_b32 v1, {OOB}\nv_cndmask_b32 v{vA+2}, v1, v{vA+2}, s[58:59]")
    a(f"v_mov_b32 v1, 1\ns_waitcnt vmcnt(0)\ns_mov_b64 exec, 1\nbuffer_store_dword v1, off, {WS}, s{T1} sc1\ns_mov_b64 exec, -1")
    rtstamp(a, 8)
    a(f"s_mov_b32 s{S_TO}, {TIMEOUT}\nla_lw:\nbuffer_load_dword v1, v3, {WS}, 0 offen sc1\ns_waitcnt vmcnt(0)\nv_cmp_eq_u32 vcc, 0, v1\ns_cbranch_vccz la_lg\ns_sleep 1")
    tmo(a, "la_lw", "la_exit2")
    a("la_lg:")
    for i in range(3): a(f"buffer_load_dwordx4 {vr(vRaw+4*i,4)}, v{vA+i}, s[{S_X}:{S_X+3}], s39 offen sc1")
    a(f"s_lshr_b32 s37, s{S_RANK}, 2\ns_and_b32 s38, s{S_RANK}, 3\ns_lshr_b32 s{T1}, s{S_W}, 1\ns_and_b32 s{T2}, s{S_W}, 1")
    vexpr(a, vA, [(2, 3, 1024), (0, 2, 256), (5, 1, 16)], [(37, 40960), (T1, 20480), (38, 64), (T2, 32), HF])
    a(f"v_mov_b32 v1, {OOB}\nv_cndmask_b32 v{vA+1}, v1, v{vA}, s[58:59]\ns_waitcnt vmcnt(0)")
    for j in range(12): a(f"v_lshlrev_b32 v{vY+2*j}, 16, v{vRaw+j}\nv_and_b32 v{vY+2*j+1}, s36, v{vRaw+j}")
    def halfsum():
        a(f"v_add_f32 v{m}, v{m}, v{t}"); rowsum(a, m)
        a(f"v_mov_b32 v{t}, v{m}\ns_nop 1\nv_permlane16_swap_b32 v{t}, v{m}\nv_add_f32 v{m}, v{m}, v{t}\nv_mul_f32 v{m}, {hex(f2u(1/640))}, v{m}")
    a(f"v_pk_add_f32 {vr(m,2)}, {vr(vY,2)}, {vr(vY+2,2)}")
    for j in range(2, 12): a(f"v_pk_add_f32 {vr(m,2)}, {vr(m,2)}, {vr(vY+2*j,2)}")
    halfsum()
    a(f"v_cndmask_b32 v{t}, 0, v{m}, s[58:59]")
    for j in range(24): a(f"v_sub_f32 v{vY+j}, v{vY+j}, v{m if j < 16 else t}")
    a(f"v_pk_mul_f32 {vr(m,2)}, {vr(vY,2)}, {vr(vY,2)}")
    for j in range(1, 12): a(f"v_pk_fma_f32 {vr(m,2)}, {vr(vY+2*j,2)}, {vr(vY+2*j,2)}, {vr(m,2)}")
    halfsum()
    a(f"v_add_f32 v{m}, {hex(f2u(1e-5))}, v{m}\nv_rsq_f32 v{m}, v{m}\ns_nop 0")
    for j in range(24): a(f"v_mul_f32 v{vY+j}, v{vY+j}, v{m}")
    for j in range(12): a(f"v_cvt_pk_bf16_f32 v{vRaw+j}, v{vY+2*j}, v{vY+2*j+1}")
    for i in range(3): a(f"s_mov_b32 s{T1}, {8192*i}\nbuffer_store_dwordx4 {vr(vRaw+4*i,4)}, v{vA + (i >> 1)}, {WS}, s{T1} offen sc1")
    saddr(a, T1, [(37, 128), (38, 4), F_HF])
    a(f"v_mov_b32 v1, 1\ns_waitcnt vmcnt(0)\ns_barrier\ns_cmp_lg_u32 s{S_W}, 0\ns_cbranch_scc1 la_mr\ns_mov_b64 exec, 1\nbuffer_store_dword v1, off, {WS}, s{T1} sc1\ns_mov_b64 exec, -1\nla_mr:")
    rtstamp(a, 9)
    a(f"s_mov_b32 s{S_L}, 1\ns_setpc_b64 s[66:67]")
```

```python
from asmlib import *
from layout import *
from chain import *

LIN = [(0, 6, 16)]
def fail_exit(a, FAIL):
    a(f"{FAIL}:\ns_mov_b64 exec, 1\nv_mov_b32 v1, {ERR}\nv_mov_b32 v3, 1\nbuffer_atomic_add v3, v1, {WS}, 0 offen\ns_waitcnt vmcnt(0) lgkmcnt(0)\ns_endpgm")
def tmo(a, L, FAIL): a(f"s_sub_u32 s{S_TO}, s{S_TO}, 1\ns_cmp_lg_u32 s{S_TO}, 0\ns_cbranch_scc1 {L}\ns_branch {FAIL}")
def sbase(a, dst, terms):
    saddr(a, T0, terms); a(f"s_add_u32 s{dst}, s{S_PTR}, s{T0}\ns_addc_u32 s{dst+1}, s{S_PTR+1}, 0")

def emit_proj(a, name, opt):
    c = Ctx(a, name)
    FAIL = c.lab("fail")
    sH, sS, sHF, sOUT, sBUF, sFV, sC, sPC, sY, sRDY = 34, 35, 36, 37, 38, 39, 40, 41, 42, 43
    sA, sB = 44, 48
    decode = f"s_lshr_b32 s{sY}, s{S_RANK}, 5\ns_sub_u32 s{sY}, s{sY}, 4\ns_lshl_b32 s{T0}, s{sY}, 3\ns_and_b32 s{sH}, s{S_RANK}, 7\ns_add_u32 s{sH}, s{sH}, s{T0}\ns_bfe_u32 s{sC}, s{S_RANK}, 0x20003"
    a(decode)
    for d, lim in ((sA, 2), (sB, 1)):
        a(f"s_cmp_lt_u32 s{sC}, {lim}\ns_cselect_b32 s{d}, s{S_WK}, s{S_WQ}\ns_cselect_b32 s{d+1}, s{S_WK+1}, s{S_WQ+1}\ns_mov_b32 s{d+2}, {W_BYTES}\ns_mov_b32 s{d+3}, 0x00020000")
    vD, vTR, vHs, vHr, vSt, vFl, vCl, vNEG = 4, 8, 11, 12, 13, 15, 16, 20
    vAcc, vO, vFR = 24, 48, 64
    HB0 = 122880
    sRP, vHF = 52, 17
    def hready(nxt):
        R = c.lab("hw"); B = c.lab("hb")
        a(f"s_add_u32 s{T2}, s{sS}, {nxt}\ns_cmp_lt_u32 s{T2}, s{sRDY}\ns_cbranch_scc1 {B}\ns_mov_b32 s{S_TO}, {TIMEOUT}\n{R}:")
        a(f"buffer_load_dwordx4 {vr(vFR+32,4)}, v{vHF}, {WS}, 0 offen sc1\ns_waitcnt vmcnt(0)\nv_and_b32 v3, v{vFR+32}, v{vFR+33}\nv_and_b32 v1, v{vFR+34}, v{vFR+35}\nv_and_b32 v3, v3, v1\nv_cmp_eq_u32 vcc, 0, v3")
        a(f"s_ff1_i32_b64 s{sRDY}, vcc\ns_cmp_lt_u32 s{T2}, s{sRDY}\ns_cbranch_scc1 {B}\ns_sleep 1")
        tmo(a, R, FAIL); a(f"{B}:")
    def hsetup():
        vexpr(a, vHs, LIN, [(S_W, 10240), HF]); vexpr(a, vHF, [(0, 6, 128)], [F_HF])
        a(f"s_mov_b32 s{sHF}, 0\ns_mul_i32 s{sBUF}, s{S_W}, 10240\ns_add_u32 s{sBUF}, s{sBUF}, {HB0}\ns_mov_b32 s{sS}, 0\ns_sub_u32 s{sRDY}, s{S_L}, 1")
    hsetup()
    def hdma(k):
        a(f"s_add_u32 m0, s{sBUF}, {k*1024}\ns_add_u32 s{T0}, s{sHF}, {k*1024}")
        a(f"buffer_load_dwordx4 v{vHs}, {WS}, s{T0} offen sc1 lds")
    a(f"v_bfe_u32 v1, v{LANE}, 4, 1\ns_and_b32 s{T0}, s{S_W}, 1\ns_lshl_b32 s{T0}, s{T0}, 1\nv_or_b32 v1, s{T0}, v1\nv_lshlrev_b32 v1, 1, v1\nv_and_b32 v3, 7, v{LANE}\nv_xor_b32 v3, v3, v1\nv_lshlrev_b32 v3, 4, v3")
    for i in range(3):
        if i < 2: a(f"s_lshl_b32 s{T1}, s{sC}, 1\ns_add_u32 s{T1}, s{T1}, {i}"); smod(a, T1, 3)
        else: a(f"s_mov_b32 s{T1}, s{sC}")
        vexpr(a, vD + i, [(3, 3, 12288)], [(sH, 384), (S_W, 8 * 12288), (T1, 128)]); a(f"v_add_u32 v{vD+i}, v{vD+i}, v3")
    def wdma(ch):
        a(f"s_lshl_b32 s{T1}, s{S_W}, 10")
        for k in range(5):
            a(f"s_mov_b32 s{T0}, {(160*ch + 32*k) * 12288}")
            for i, d in enumerate((sA, sB, S_WV)):
                a(f"s_add_u32 m0, s{T1}, {(ch & 1) * 61440 + k * 12288 + i * 4096}\ns_nop 0")
                a(f"buffer_load_dwordx4 v{vD+i}, s[{d}:{d+3}], s{T0} offen lds")
    ROW = [(4, 2, 1024), (2, 2, 128)]
    a(f"s_and_b32 s{T1}, s{S_W}, 1\ns_lshl_b32 s{T1}, s{T1}, 1\nv_bfe_u32 v3, v{LANE}, 1, 1\nv_or_b32 v3, s{T1}, v3\nv_bfe_u32 v1, v{LANE}, 3, 2\nv_xor_b32 v3, v3, v1\nv_lshlrev_b32 v3, 5, v3\ns_lshr_b32 s{T1}, s{S_W}, 1")
    vexpr(a, vTR, ROW + [(0, 1, 16)], [(T1, 4096)]); a(f"v_add_u32 v{vTR}, v{vTR}, v3")
    a(f"v_bfe_u32 v1, v{LANE}, 3, 2\nv_xor_b32 v3, s{S_W}, v1\nv_lshlrev_b32 v3, 5, v3")
    vexpr(a, vTR + 1, ROW + [(0, 2, 8)], [8192]); a(f"v_add_u32 v{vTR+1}, v{vTR+1}, v3")
    W = lambda tl, ks: ar((ks * 3 + tl) * 4, 4)
    wdma(0); wdma(1)
    for ch in range(4):
        a(f"s_waitcnt vmcnt({[15, 15, 15, 10][ch]})\ns_barrier")
        if ch & 1: a(f"v_add_u32 v{vTR}, 61440, v{vTR}\nv_add_u32 v{vTR+1}, 61440, v{vTR+1}")
        for k in range(5):
            for tl in range(3):
                for q in range(2):
                    a(f"ds_read_b64_tr_b16 {ar(((5*ch+k)*3+tl)*4+2*q, 2)}, v{vTR+(tl>>1)} offset:{k * 12288 + q * 512 + (8 if tl == 1 else 0)}")
            a("s_waitcnt lgkmcnt(6)")
        if ch & 1: a(f"v_subrev_u32 v{vTR}, 61440, v{vTR}\nv_subrev_u32 v{vTR+1}, 61440, v{vTR+1}")
        a("s_waitcnt lgkmcnt(0)\ns_barrier")
        if ch == 0: arrive(a)
        if ch < 2: wdma(ch + 2)
        if ch == 2:
            census(a)
            for k in range(10): hdma(k)
    AGAIN = c.lab("again"); GO = c.lab("go")
    a(f"s_branch {GO}\n{AGAIN}:"); a(decode); hsetup(); hready(0)
    for k in range(10): hdma(k)
    a(f"{GO}:")
    rtstamp(a, 2); cystamp(a, 5)
    a(f"s_lshl_b32 s{T1}, s{sC}, 2\ns_add_u32 s{T1}, s{T1}, s{S_W}\ns_cmp_ge_u32 s{T1}, 6\ns_cselect_b32 s{T2}, {QF - KF - 6144}, 0")
    vexpr(a, vSt, LIN, [(sH, 12288), (T1, 1024), (T2, 1), KF])
    vexpr(a, vSt + 1, LIN, [(sH, 12288), (T1, 1024), VT])
    saddr(a, sRP, [RPL])
    vexpr(a, vFl, [(0, 6, 4)], [(sH, 128), (sC, 4), F_PROJ]); keep(a, vFl, f"v_cmp_gt_u32 vcc, 1, v{LANE}")
    a(f"s_lshl_b32 s{T1}, s{sC}, 2\ns_add_u32 s{T1}, s{T1}, s{S_W}\ns_mul_i32 s{T2}, s{sH}, 10\ns_add_u32 s{T2}, s{T2}, s{T1}\ns_lshr_b32 s{T0}, s{T2}, 6\ns_lshl_b32 s{T0}, s{T0}, 14\ns_and_b32 s{T2}, s{T2}, 63\ns_lshl_b32 s{T2}, s{T2}, 7\ns_add_u32 s{T2}, s{T2}, s{T0}")
    a(f"v_lshl_add_u32 v{vCl}, v{LANE}, 4, s{T2}\ns_cmp_lt_u32 s{T1}, 10\ns_cselect_b32 s{T1}, 8, 0")
    keep(a, vCl, f"v_cmp_gt_u32 vcc, s{T1}, v{LANE}")
    for i in range(4): a(f"v_mov_b32 v{vNEG+i}, -1")
    a(f"v_lshlrev_b32 v{vHr}, 4, v{LANE}\nv_add_u32 v{vHr}, {HB0}, v{vHr}")
    a(f"s_mov_b32 s{sS}, 0\ns_mov_b32 s{sOUT}, 0")
    RA = 3
    def rd(ks):
        for b in range(2): a(f"ds_read_b128 {vr(vFR + 8*(ks % (RA+1)) + 4*b, 4)}, v{vHr} offset:{(b*20+ks)*1024}")
    def stores():
        return [f"buffer_store_dwordx4 {vr(vO,4)}, v{vSt}, {WS}, s{sOUT} offen sc1",
                f"s_add_u32 s{T0}, s{sOUT}, 6144\nbuffer_store_dwordx4 {vr(vO+4,4)}, v{vSt}, {WS}, s{T0} offen sc1",
                f"buffer_store_dwordx4 {vr(vO+8,4)}, v{vSt+1}, {WS}, s{sOUT} offen sc1",
                f"buffer_store_dwordx4 {vr(vNEG,4)}, v{vCl}, {WS}, s{sPC} offen sc1\ns_add_u32 s{sOUT}, s{sOUT}, {32*12288}"]
    def flag(val):
        L = c.lab("f")
        a(f"s_cmp_lg_u32 s{S_W}, 0\ns_cbranch_scc1 {L}\nv_mov_b32 v3, {val}\nbuffer_store_dword v3, v{vFl}, {WS}, 0 offen sc1\n{L}:")
    def body(deferred):
        for ks in range(RA): rd(ks)
        hready(1)
        a(f"s_add_u32 s{sHF}, s{sHF}, 40960\ns_min_u32 s{sHF}, s{sHF}, {63*40960}\ns_sub_u32 s{T1}, s{sBUF}, {HB0}\ns_add_u32 s{T2}, s{sBUF}, {HB0}\ns_cmp_ge_u32 s{sBUF}, {HB0}\ns_cselect_b32 s{sBUF}, s{T1}, s{T2}")
        side = (stores() if deferred else []) + list(range(10))
        for ks in range(20):
            if ks + RA < 20: rd(ks + RA)
            a(f"s_waitcnt lgkmcnt({2 * min(RA, 19 - ks)})")
            for tl in range(3):
                for b in range(2):
                    d = vr(vAcc + 8 * tl + 4 * b, 4); h = vr(vFR + 8 * (ks % (RA+1)) + 4 * b, 4)
                    A, B = (h, W(tl, ks)) if tl == 2 else (W(tl, ks), h)
                    a(f"v_mfma_f32_16x16x32_bf16 {d}, {A}, {B}, {'0' if ks == 0 else d}")
                if tl == 0 and side:
                    x = side.pop(0)
                    hdma(x) if isinstance(x, int) else a(x)
        a(f"v_xor_b32 v{vHr}, {HB0}, v{vHr}\ns_add_u32 s{sS}, s{sS}, 1")
        a(f"s_add_u32 s{T0}, s{sS}, 1\ns_lshr_b32 s{T1}, s{T0}, 4\ns_xor_b32 s{T1}, s{T1}, s{S_POL}\ns_and_b32 s{T1}, s{T1}, 1\ns_lshl_b32 s{T1}, s{T1}, 13\ns_lshl_b32 s{T0}, s{T0}, 17\ns_add_u32 s{sPC}, s{T0}, s{T1}\ns_add_u32 s{sPC}, s{sPC}, s{sRP}")
        cv = lambda d, s_: a(f"v_cvt_pk_bf16_f32 v{d}, v{s_}, v{s_+1}\nv_cvt_pk_bf16_f32 v{d+1}, v{s_+2}, v{s_+3}")
        for b in range(2): cv(vO + 4 * b, vAcc + 4 * b); cv(vO + 4 * b + 2, vAcc + 8 + 4 * b)
        cv(vO + 8, vAcc + 16); cv(vO + 10, vAcc + 20)
    L0 = c.lab("first"); LOOP = c.lab("loop"); L1 = c.lab("n")
    a(f"s_waitcnt vmcnt(0)\ns_barrier\n{L0}:")
    body(False)
    a(f"s_cmp_eq_u32 s{sS}, 3\ns_cbranch_scc1 {LOOP}")
    for x in stores(): a(x)
    a("s_waitcnt vmcnt(0)\ns_barrier"); flag(f"s{sS}")
    a(f"s_branch {L0}")
    a(f".p2align 6\n{LOOP}:\ns_waitcnt vmcnt(0)\ns_barrier\ns_sub_u32 s{sFV}, s{sS}, 1"); flag(f"s{sFV}")
    body(True)
    a(f"s_cmp_lt_u32 s{sS}, 64\ns_cbranch_scc1 {LOOP}")
    for x in stores(): a(x)
    a("s_waitcnt vmcnt(0)\ns_barrier"); flag(64)
    rtstamp(a, 3); cystamp(a, 6)
    if opt.get("nob1"): a("s_endpgm")
    a(f"s_mul_i32 s{T1}, s{sY}, 24\ns_and_b32 s{T2}, s{S_RANK}, 31\ns_add_u32 s{T1}, s{T1}, s{T2}")
    vexpr(a, 3, [(0, 6, 128)], [(T1, 65536), (S_W, 16384)])
    a(f"s_mov_b32 s{T1}, 8192\nbuffer_load_dword v4, v3, s[{S_W2}:{S_W2+3}], 0 offen\nbuffer_load_dword v5, v3, s[{S_W2}:{S_W2+3}], s{T1} offen")
    sDT, sFT, sW1, sH2, sLB = 34, 36, 37, 38, 39
    a(f"s_and_b32 s{sDT}, s{S_RANK}, 7\ns_mul_i32 s{sFT}, s{sY}, 3\ns_add_u32 s{sFT}, s{sFT}, s{sC}")
    vDW, vDH, vRW, vRH, vPF, vBi, vAc, vFW, vFH, vX = 6, 7, 9, 10, 11, 12, 16, 56, 64, 84
    a(f"v_bfe_u32 v1, v{LANE}, 4, 2\nv_lshlrev_b32 v1, 1, v1\nv_and_b32 v3, 7, v{LANE}\nv_xor_b32 v3, v3, v1\nv_lshlrev_b32 v3, 4, v3")
    vexpr(a, vDW, [(3, 3, 3072)], [(sFT, 256), (S_W, 8 * 3072)]); a(f"v_add_u32 v{vDW}, v{vDW}, v3")
    for k in range(2):
        a(f"s_mul_i32 s{T1}, s{S_W}, 80\ns_add_u32 s{T1}, s{T1}, {16*k}\nv_add_u32 v1, s{T1}, v{LANE}\nv_mul_u32_u24 v3, 6554, v1\nv_lshrrev_b32 v3, 16, v3\nv_mul_u32_u24 v{vDH+k}, 10, v3\nv_sub_u32 v1, v1, v{vDH+k}")
        a(f"v_mul_u32_u24 v{vDH+k}, 1280, v3\nv_lshl_add_u32 v{vDH+k}, v1, 4, v{vDH+k}\ns_mul_i32 s{T1}, s{sDT}, 160\nv_add_u32 v{vDH+k}, s{T1}, v{vDH+k}")
    a(f"s_and_b32 s{T1}, s{S_W}, 1\ns_lshl_b32 s{T1}, s{T1}, 1\nv_bfe_u32 v3, v{LANE}, 1, 1\nv_or_b32 v3, s{T1}, v3\nv_bfe_u32 v1, v{LANE}, 3, 2\nv_xor_b32 v3, v3, v1\nv_lshlrev_b32 v3, 5, v3\ns_lshr_b32 s{T1}, s{S_W}, 1")
    vexpr(a, vRW, [(2, 4, 128), (0, 1, 16)], [(T1, 4096)]); a(f"v_add_u32 v{vRW}, v{vRW}, v3")
    vexpr(a, vRH, [(2, 4, 160), (0, 2, 8)], [16384])
    vexpr(a, vPF, [(3, 2, 128), (0, 3, 4)], [F_FIN])
    a(f"s_load_dwordx2 s[{sA}:{sA+1}], s[0:1], 72\ns_waitcnt lgkmcnt(0)\ns_and_b32 s{sA+1}, s{sA+1}, 0xffff\ns_mov_b32 s{sA+2}, 3072\ns_mov_b32 s{sA+3}, 0x00020000")
    vexpr(a, 3, [(4, 2, 16)], [(sFT, 256), (S_W, 64)])
    a(f"buffer_load_dwordx4 {vr(vBi,4)}, v3, s[{sA}:{sA+3}], 0 offen")
    for i in range(40): a(f"v_mov_b32 v{vAc+i}, 0")
    def w1dma():
        a(f"s_lshl_b32 s{T1}, s{S_W}, 10\ns_add_u32 m0, s{T1}, s{sLB}\ns_add_u32 s{T1}, s{T1}, s{sLB}\nbuffer_load_dwordx4 v{vDW}, s[{S_W1}:{S_W1+3}], s{sW1} offen lds")
        a(f"s_add_u32 m0, s{T1}, 4096\ns_add_u32 s{T0}, s{sW1}, 128\nbuffer_load_dwordx4 v{vDW}, s[{S_W1}:{S_W1+3}], s{T0} offen lds")
    a(f"s_mov_b32 s{sS}, 0\ns_mov_b32 s{sW1}, 0\ns_mov_b32 s{sH2}, {H2}\ns_mov_b32 s{sLB}, 0")
    w1dma()
    LOOP = c.lab("bl"); W1 = c.lab("bw"); G1 = c.lab("bg")
    a(f"{LOOP}:\ns_cmp_lg_u32 s{S_W}, 0\ns_cbranch_scc1 {G1}\ns_mov_b32 s{S_TO}, {TIMEOUT}\ns_and_b32 s{T2}, s{sS}, 3\ns_lshl_b32 s{T2}, s{T2}, 9\nv_mov_b32 v3, s{sS}")
    a(f"{W1}:\nbuffer_load_dword v4, v{vPF}, {WS}, s{T2} offen sc1\ns_waitcnt vmcnt(0)\nv_cmp_ge_u32 vcc, v3, v4\ns_cbranch_vccz {G1}\ns_sleep 2")
    tmo(a, W1, FAIL)
    a(f"{G1}:\ns_barrier")
    a(f"s_mul_i32 s{T1}, s{S_W}, 1280\ns_add_u32 m0, s{T1}, 16384\ns_add_u32 s{T1}, s{T1}, {16384+256}\nbuffer_load_dwordx4 v{vDH}, {WS}, s{sH2} offen sc1 lds")
    a(f"s_mov_b32 m0, s{T1}\ns_xor_b32 s{sLB}, s{sLB}, 8192\nbuffer_load_dwordx4 v{vDH+1}, {WS}, s{sH2} offen sc1 lds")
    a(f"s_add_u32 s{sW1}, s{sW1}, {32*3072}\ns_add_u32 s{sH2}, s{sH2}, {32*1280}")
    w1dma()
    a("s_waitcnt vmcnt(2)\ns_barrier")
    for i in range(2):
        for q in range(2): a(f"ds_read_b64_tr_b16 {vr(vFW+4*i+2*q,2)}, v{vRW} offset:{q*2048 + 8*i}")
    for j in range(5):
        for q in range(2): a(f"ds_read_b64_tr_b16 {vr(vFH+4*j+2*q,2)}, v{vRH} offset:{q*2560 + 32*j}")
    a(f"v_xor_b32 v{vRW}, 8192, v{vRW}")
    for j in range(5):
        a(f"s_waitcnt lgkmcnt({8-2*j})")
        for i in range(2):
            d = vr(vAc + 8 * j + 4 * i, 4)
            a(f"v_mfma_f32_16x16x32_bf16 {d}, {vr(vFW+4*i,4)}, {vr(vFH+4*j,4)}, {d}")
    a(f"s_add_u32 s{sS}, s{sS}, 1\ns_cmp_lt_u32 s{sS}, 64\ns_cbranch_scc1 {LOOP}")
    k0 = -2 * math.sqrt(2 / math.pi) * math.log2(math.e)
    a(f"s_mov_b32 s{T1}, 0xffff0000\ns_mov_b32 s{T2}, {hex(f2u(k0 * 0.044715))}\nv_mov_b32 v4, {hex(f2u(k0))}")
    for i in range(4): a(f"v_lshlrev_b32 v{vFW+2*i}, 16, v{vBi+i}\nv_and_b32 v{vFW+1+2*i}, s{T1}, v{vBi+i}")
    vexpr(a, 3, LIN, [(sDT, 5 * 49152), (sFT, 4096), (S_W, 1024), UU])
    for j in range(5):
        b = vAc + 8 * j; t = vX + 8 * j
        for i in range(0, 8, 2): a(f"v_pk_add_f32 {vr(b+i,2)}, {vr(b+i,2)}, {vr(vFW+i,2)}")
        for i in range(8): a(f"v_mul_f32 v{t+i}, v{b+i}, v{b+i}")
        for i in range(8): a(f"v_fma_f32 v{t+i}, v{t+i}, s{T2}, v4")
        for i in range(8): a(f"v_mul_f32 v{t+i}, v{t+i}, v{b+i}")
        for i in range(8): a(f"v_exp_f32 v{t+i}, v{t+i}")
        for i in range(8): a(f"v_add_f32 v{t+i}, 1.0, v{t+i}")
        for i in range(8): a(f"v_rcp_f32 v{t+i}, v{t+i}")
        for i in range(8): a(f"v_mul_f32 v{b+i}, v{b+i}, v{t+i}")
        for i in range(4): a(f"v_cvt_pk_bf16_f32 v{t+i}, v{b+2*i}, v{b+2*i+1}")
        a(f"s_mov_b32 s{T0}, {49152*j}\nbuffer_store_dwordx4 {vr(t,4)}, v3, {WS}, s{T0} offen sc1")
    saddr(a, T1, [(sDT, 512), (sY, 128), (sC, 4), (S_W, 0x10000000), F_U])
    a(f"v_mov_b32 v3, 1\ns_waitcnt vmcnt(0)\ns_barrier\ns_mov_b64 exec, 1\nbuffer_store_dword v3, off, {WS}, s{T1} sc1\ns_mov_b64 exec, -1")
    rtstamp(a, 4); mixer(a, AGAIN)
    fail_exit(a, FAIL)

def emit_att(a, name, opt):
    c = Ctx(a, name)
    sH, sS, sO, sO2, sRDY, sC, sFB, sV = 34, 35, 36, 37, 38, 39, 40, 44
    FAIL = c.lab("fail")
    a(f"s_lshr_b32 s{T0}, s{S_RANK}, 5\ns_lshl_b32 s{T0}, s{T0}, 3\ns_and_b32 s{sH}, s{S_RANK}, 7\ns_add_u32 s{sH}, s{sH}, s{T0}")
    a("s_waitcnt vmcnt(0)\ns_barrier"); arrive(a)
    census(a)
    AGAIN = c.lab("again")
    a(f"{AGAIN}:\ns_lshr_b32 s{T0}, s{S_RANK}, 5\ns_lshl_b32 s{T0}, s{T0}, 3\ns_and_b32 s{sH}, s{S_RANK}, 7\ns_add_u32 s{sH}, s{sH}, s{T0}")
    vL, vKM, vVM, vCF, vOF, vT, vOP, vRow = 4, 5, 6, 7, 8, 10, 9, 14
    vMK, vS, vM, vP, vG, vD, vO, vkm, vvm = 20, 36, 52, 60, 68, 72, 88, 96, 120
    aK, aQ, aV = 0, 48, 96
    sOB, sOV, vPA = 48, 12, 144
    vexpr(a, vL, LIN, [(sH, 12288)])
    vexpr(a, vKM, [(2, 1, 4 * 64), (3, 1, 2 * 64), (0, 1, 64), (4, 2, 16)], [(sH, 3072), KM])
    vexpr(a, vVM, [(0, 6, 4)], [(sH, 3072), VM])
    vexpr(a, vCF, [(0, 6, 4)], [(sH, 128), F_CHAIN])
    vexpr(a, vOF, [(0, 6, 4)], [(sH, 128), (S_W, 4), F_ATT]); keep(a, vOF, f"v_cmp_gt_u32 vcc, 1, v{LANE}")
    sbase(a, sFB, [(sH, 128), F_PROJ])
    a(f"s_lshr_b32 s{T1}, s{sH}, 3"); sbase(a, sOB, [(T1, 512), F_O])
    for i in range(5):
        a(f"v_add_u32 v1, {64*i}, v{LANE}\nv_mul_u32_u24 v3, 1639, v1\nv_lshrrev_b32 v3, 16, v3\nv_mul_u32_u24 v{vPA+i}, 40, v3\nv_sub_u32 v1, v1, v{vPA+i}")
        a(f"v_mul_u32_u24 v{vPA+i}, {2048*160}, v3\nv_lshl_add_u32 v{vPA+i}, v1, 2, v{vPA+i}\ns_mul_i32 s{T2}, s{sH}, 160\nv_add_u32 v{vPA+i}, s{T2}, v{vPA+i}")
    vFN = 15; sN = 42
    a(f"s_and_b32 s{T2}, s{sH}, 7\ns_xor_b32 s{sN}, s{S_W}, 2"); vexpr(a, vFN, [(0, 6, 4)], [(sN, 512), (T1, 128), (T2, 4), F_FIN]); keep(a, vFN, f"v_cmp_gt_u32 vcc, 1, v{LANE}")
    vexpr(a, vRow, [(0, 6, 4)], [(sH, 1280)])
    vXA, sXS = 149, 50
    a(f"s_mul_i32 s{sXS}, s{S_L}, 3\ns_cmp_eq_u32 s{S_L}, 0\ns_cselect_b64 vcc, -1, 0")
    for i in range(5): a(f"v_add_u32 v1, {256*i}, v{vRow}\nv_cndmask_b32 v{vXA+i}, v{vPA+i}, v1, vcc")
    vexpr(a, vT, [(2, 2, 8), (0, 2, 1)]); vexpr(a, vT + 1, [(4, 2, 8)])
    a(f"v_sub_u32 v{vT}, v{vT}, v{vT+1}\nv_mov_b32 v{vT+1}, {hex(f2u(-1e30))}")
    for rb in range(2):
        for b in range(2):
            for r in range(4):
                a(f"v_cmp_gt_i32 vcc, {4*b + r - 4*rb}, v{vT}\ns_nop 1\nv_cndmask_b32 v{vMK+8*rb+4*b+r}, 0, v{vT+1}, vcc")
    for i in range(12): a(f"v_mov_b32 v{vvm+2*i+1}, 0")
    a(f"v_mov_b32 v{vG+1}, 0\nv_mov_b32 v{vG+3}, 0")
    a(f"s_mov_b32 s{sC}, {hex(f2u(192 ** -0.5 * math.log2(math.e)))}\ns_mov_b32 s{sS}, s{S_W}\ns_mov_b32 s{sRDY}, 0")
    LOOP = c.lab("loop"); W2 = c.lab("w"); G2 = c.lab("g")
    sN, sNO = 42, 43
    def fetch():
        W1 = c.lab("w"); G1 = c.lab("g")
        a(f"s_mov_b32 s{S_TO}, {TIMEOUT}\ns_mul_i32 s{sNO}, s{sN}, {32*12288}")
        a(f"{W1}:\ns_cmp_gt_u32 s{sRDY}, s{sN}\ns_cbranch_scc1 {G1}")
        a(f"s_load_dwordx4 s[{sV}:{sV+3}], s[{sFB}:{sFB+1}], 0 glc")
        a(f"s_waitcnt lgkmcnt(0)\ns_min_u32 s{sRDY}, s{sV}, s{sV+1}\ns_min_u32 s{sRDY}, s{sRDY}, s{sV+2}")
        tmo(a, W1, FAIL)
        a(f"{G1}:")
        for base, dst in ((KF, aK), (VT, aV), (QF, aQ)):
            for k0 in range(0, 12, 4):
                a(f"s_add_u32 s{T0}, s{sNO}, {base + k0*1024}")
                for k in range(4): a(f"buffer_load_dwordx4 {ar(dst+4*(k0+k),4)}, v{vL}, {WS}, s{T0} offen offset:{k*1024} sc1")
    def nap(long_):
        L = c.lab("nap")
        a(f"s_sleep 1\ns_cmp_ge_u32 s{sS}, 61\ns_cbranch_scc1 {L}\ns_sleep {long_}\n{L}:")
    a(f"s_mov_b32 s{sN}, s{sS}"); fetch()
    NF = c.lab("nf")
    a(f"{LOOP}:\ns_cmp_ge_u32 s{sS}, 64\ns_cbranch_scc1 {NF}\ns_mov_b32 s{S_TO}, {TIMEOUT}\ns_mul_i32 s{sO}, s{sS}, {32*12288}\ns_mul_i32 s{sO2}, s{sS}, {32*3072}")
    a("s_waitcnt vmcnt(0)")
    for u in range(6):
        for rb in range(2):
            for b in range(2):
                d = vr(vS + 8 * rb + 4 * b, 4)
                a(f"v_mfma_f32_16x16x32_bf16 {d}, {ar(aK+4*(6*b+u),4)}, {ar(aQ+4*(6*rb+u),4)}, {vr(vMK+8*rb+4*b,4) if u == 0 else d}")
    a(f"v_mov_b32 v{vT+1}, s{sS}\ns_mov_b64 exec, 7")
    a(f"{W2}:\nbuffer_load_dword v{vT}, v{vCF}, {WS}, 0 offen sc1\ns_waitcnt vmcnt(0)\nv_cmp_ge_u32 vcc, v{vT+1}, v{vT}\ns_cbranch_vccz {G2}"); nap(opt.get("nap1", 6))
    tmo(a, W2, FAIL)
    a(f"{G2}:\ns_mov_b64 exec, -1")
    for u in range(6): a(f"buffer_load_dwordx4 {vr(vkm+4*u,4)}, v{vKM}, {WS}, s{sO2} offen offset:{u*512} sc1")
    for t in range(12): a(f"buffer_load_dword v{vvm+2*t}, v{vVM}, {WS}, s{sO2} offen offset:{t*256} sc1")
    for u in range(6):
        a(f"s_waitcnt vmcnt({17-u})")
        for rb in range(2):
            d = vr(vM + 4 * rb, 4)
            a(f"v_mfma_f32_16x16x32_bf16 {d}, {vr(vkm+4*u,4)}, {ar(aQ+4*(6*rb+u),4)}, {'0' if u == 0 else d}")
    nop(a, 8)
    def both(f):
        for rb in range(2): f(rb, [vS + 8 * rb + i for i in range(8)] + [vM + 4 * rb, vM + 4 * rb + 1], vT + 2 * rb, vT + 2 * rb + 1)
    def red(op):
        for sw in ("v_permlane16_swap_b32", "v_permlane32_swap_b32"):
            both(lambda rb, x, m, t: a(f"v_mov_b32 v{t}, v{m}"))
            a("s_nop 1")
            both(lambda rb, x, m, t: a(f"{sw} v{t}, v{m}"))
            both(lambda rb, x, m, t: a(f"{op} v{m}, v{m}, v{t}"))
    both(lambda rb, x, m, t: a(f"v_max3_f32 v{m}, v{x[0]}, v{x[1]}, v{x[2]}\nv_max3_f32 v{t}, v{x[3]}, v{x[4]}, v{x[5]}"))
    both(lambda rb, x, m, t: a(f"v_max3_f32 v{m}, v{m}, v{x[6]}, v{x[7]}\nv_max3_f32 v{t}, v{t}, v{x[8]}, v{x[9]}"))
    both(lambda rb, x, m, t: a(f"v_max_f32 v{m}, v{m}, v{t}"))
    red("v_max_f32")
    both(lambda rb, x, m, t: a(f"v_mul_f32 v{m}, s{sC}, v{m}"))
    both(lambda rb, x, m, t: [a(f"v_fma_f32 v{r}, v{r}, s{sC}, -v{m}") for r in x])
    both(lambda rb, x, m, t: [a(f"v_exp_f32 v{r}, v{r}") for r in x])
    both(lambda rb, x, m, t: a(f"v_add_f32 v{m}, v{x[0]}, v{x[1]}\nv_add_f32 v{t}, v{x[2]}, v{x[3]}"))
    for i in range(4, 10, 2): both(lambda rb, x, m, t: a(f"v_add_f32 v{m}, v{m}, v{x[i]}\nv_add_f32 v{t}, v{t}, v{x[i+1]}"))
    both(lambda rb, x, m, t: a(f"v_add_f32 v{m}, v{m}, v{t}"))
    red("v_add_f32")
    both(lambda rb, x, m, t: a(f"v_rcp_f32 v{m}, v{m}"))
    a("s_nop 0")
    both(lambda rb, x, m, t: [a(f"v_mul_f32 v{r}, v{r}, v{m}") for r in x])
    both(lambda rb, x, m, t: [a(f"v_cvt_pk_bf16_f32 v{vP+4*rb+i}, v{x[2*i]}, v{x[2*i+1]}") for i in range(4)] + [a(f"v_cvt_pk_bf16_f32 v{vG+2*rb}, v{x[8]}, v{x[9]}")])
    a(f"s_waitcnt vmcnt(0)\ns_add_u32 s{sO}, s{sO}, {OF}")
    def pv(u):
        for kind in range(2):
            for rb in range(2):
                for h in range(2):
                    T = 2 * u + h; d = vr((vD if u % 2 == 0 else vS) + 8 * rb + 4 * h, 4)
                    if kind == 0: a(f"v_mfma_f32_16x16x32_bf16 {d}, {ar(aV+4*T,4)}, {vr(vP+4*rb,4)}, 0")
                    else: a(f"v_mfma_f32_16x16x16_bf16 {d}, {vr(vvm+2*T,2)}, {vr(vG+2*rb,2)}, {d}")
    def out(u):
        for rb in range(2):
            s_ = (vD if u % 2 == 0 else vS) + 8 * rb
            for i in range(4): a(f"v_cvt_pk_bf16_f32 v{vO+4*rb+i}, v{s_+2*i}, v{s_+2*i+1}")
            k = 6 * rb + u
            a(f"s_add_u32 s{T0}, s{sO}, {(k >> 2) * 4096}")
            a(f"buffer_store_dwordx4 {vr(vO+4*rb,4)}, v{vL}, {WS}, s{T0} offen offset:{(k & 3) * 1024} sc1")
    pv(0)
    for u in range(1, 6): pv(u); out(u - 1)
    nop(a, 8); out(5)
    a(f"s_add_u32 s{T0}, s{sS}, 1\nv_mov_b32 v{vT+2}, s{T0}\ns_waitcnt vmcnt(0)\nbuffer_store_dword v{vT+2}, v{vOF}, {WS}, 0 offen sc1")
    a(f"s_add_u32 s{sN}, s{sS}, 4\ns_cmp_ge_u32 s{sN}, 64\ns_cbranch_scc1 {NF}"); fetch(); a(f"{NF}:")
    vR, vX = vkm, vS
    SKIP = c.lab("skip"); abl = opt.get("abl", 9)
    if abl == 0: a(f"s_branch {SKIP}")
    a(f"s_sub_u32 s{sN}, s{sS}, 2\ns_cmp_ge_u32 s{sN}, 64\ns_cbranch_scc1 {SKIP}\ns_mul_i32 s{sO}, s{sN}, {32*1280}\ns_add_u32 s{sN}, s{sN}, 1\nv_mov_b32 v{vT+2}, s{sN}")
    a(f"s_lshr_b32 s{T0}, s{sO}, s{sXS}")
    for i in range(5): a(f"buffer_load_dword v{vR+20+i}, v{vXA+i}, s[{S_X}:{S_X+3}], s{T0} offen sc1")
    W3 = c.lab("w"); G3 = c.lab("g")
    a(f"s_mov_b32 s{S_TO}, {TIMEOUT}\n{W3}:")
    regs = [12, 20, 52, 76]
    for k, r in enumerate(regs): a(f"s_load_dwordx8 s[{r}:{r+7}], s[{sOB}:{sOB+1}], {128*k} glc")
    a("s_waitcnt lgkmcnt(0)")
    for r in [q + i for q in regs for i in range(8)][1:]: a(f"s_min_u32 s12, s12, s{r}")
    a(f"s_cmp_ge_u32 s12, s{sN}\ns_cbranch_scc1 {G3}"); nap(opt.get("nap2", 16))
    tmo(a, W3, FAIL)
    a(f"{G3}:")
    if abl == 1: a(f"s_branch {SKIP}")
    for p in range(4):
        a(f"s_lshr_b32 s{T0}, s{sO}, 3\ns_add_u32 s{T0}, s{T0}, {OP + p * OP_STRIDE}")
        for i in range(5): a(f"buffer_load_dword v{vR+5*p+i}, v{vPA+i}, {WS}, s{T0} offen sc1")
    a(f"s_mov_b32 s{T2}, 0xffff0000")
    def unpack(src, add):
        for j in range(5):
            if not add: a(f"v_lshlrev_b32 v{vX+2*j}, 16, v{src+j}\nv_and_b32 v{vX+2*j+1}, s{T2}, v{src+j}")
            else: a(f"v_lshlrev_b32 v{vX+10}, 16, v{src+j}\nv_and_b32 v{vX+11}, s{T2}, v{src+j}\nv_pk_add_f32 {vr(vX+2*j,2)}, {vr(vX+2*j,2)}, {vr(vX+10,2)}")
    a("s_waitcnt vmcnt(20)"); unpack(vR + 20, False)
    for p in range(4): a(f"s_waitcnt vmcnt({15-5*p})"); unpack(vR + 5 * p, True)
    for j in range(5): a(f"v_cvt_pk_bf16_f32 v{vR+j}, v{vX+2*j}, v{vX+2*j+1}")
    if abl == 2: a(f"s_branch {SKIP}")
    a(f"s_add_u32 s{T0}, s{sO}, {X1}")
    for i in range(5): a(f"buffer_store_dword v{vR+i}, v{vRow}, {WS}, s{T0} offen offset:{256*i} sc1")
    if abl == 3: a(f"s_branch {SKIP}")
    unpack(vR, False)
    m, t = vX + 10, vX + 11
    def wavesum():
        a(f"v_add_f32 v{m}, v{m}, v{t}")
        for k in (1, 2, 4, 8): a(f"s_nop 1\nv_add_f32_dpp v{m}, v{m}, v{m} row_ror:{k} row_mask:0xf bank_mask:0xf")
        for sw in ("v_permlane16_swap_b32", "v_permlane32_swap_b32"): a(f"v_mov_b32 v{t}, v{m}\ns_nop 1\n{sw} v{t}, v{m}\nv_add_f32 v{m}, v{m}, v{t}")
        a(f"v_mul_f32 v{m}, {hex(f2u(1/640))}, v{m}")
    a(f"v_pk_add_f32 {vr(m,2)}, {vr(vX,2)}, {vr(vX+2,2)}")
    for j in range(2, 5): a(f"v_pk_add_f32 {vr(m,2)}, {vr(m,2)}, {vr(vX+2*j,2)}")
    wavesum()
    for j in range(10): a(f"v_sub_f32 v{vX+j}, v{vX+j}, v{m}")
    a(f"v_pk_mul_f32 {vr(m,2)}, {vr(vX,2)}, {vr(vX,2)}")
    for j in range(1, 5): a(f"v_pk_fma_f32 {vr(m,2)}, {vr(vX+2*j,2)}, {vr(vX+2*j,2)}, {vr(m,2)}")
    wavesum()
    a(f"v_add_f32 v{t}, {hex(f2u(1e-5))}, v{m}\nv_rsq_f32 v{t}, v{t}\ns_nop 0\nv_mul_f32 v{m}, v{m}, v{t}\nv_mul_f32 v{m}, v{m}, v{t}\nv_add_f32 v{m}, {hex(f2u(1e-5))}, v{m}\nv_rsq_f32 v{m}, v{m}\ns_nop 0\nv_mul_f32 v{t}, v{t}, v{m}")
    for j in range(10): a(f"v_mul_f32 v{vX+j}, v{vX+j}, v{t}")
    for j in range(5): a(f"v_cvt_pk_bf16_f32 v{vR+5+j}, v{vX+2*j}, v{vX+2*j+1}")
    a(f"s_add_u32 s{T0}, s{sO}, {H2}")
    for i in range(5): a(f"buffer_store_dword v{vR+5+i}, v{vRow}, {WS}, s{T0} offen offset:{256*i} sc1")
    a(f"s_waitcnt vmcnt(0)\nbuffer_store_dword v{vT+2}, v{vFN}, {WS}, 0 offen sc1\n{SKIP}:")
    a(f"s_add_u32 s{sS}, s{sS}, 4\ns_cmp_lt_u32 s{sS}, 66\ns_cbranch_scc1 {LOOP}\ns_waitcnt vmcnt(0)")
    rtstamp(a, 4); mixer(a, AGAIN)
    fail_exit(a, FAIL)

def emit_oproj(a, name):
    c = Ctx(a, name)
    sY, sCS, sS, sO, sA, sFB, sV, sFO = 34, 35, 36, 37, 38, 40, 44, 46
    FAIL = c.lab("fail")
    a(f"s_lshr_b32 s{sY}, s{S_RANK}, 5\ns_sub_u32 s{sY}, s{sY}, 4\ns_and_b32 s{sCS}, s{S_RANK}, 7")
    vD, vTR, vL, vW, vR, vAt = 4, 9, 10, 11, 12, 14
    vAcc, vFR, vX = 24, 64, 160
    for i in range(5):
        a(f"v_add_u32 v1, {64*i}, v{LANE}\nv_mul_u32_u24 v3, 6554, v1\nv_lshrrev_b32 v3, 16, v3")
        a(f"v_mul_u32_u24 v{vD+i}, 10, v3\nv_sub_u32 v1, v1, v{vD+i}\nv_lshlrev_b32 v1, 4, v1\nv_mul_u32_u24 v{vD+i}, 1280, v3\nv_add_u32 v{vD+i}, v{vD+i}, v1")
        saddr(a, T0, [(sY, 1536 * 1280), (S_W, 384 * 1280), (sCS, 160)]); a(f"v_add_u32 v{vD+i}, s{T0}, v{vD+i}")
    vexpr(a, vTR, [(4, 2, 4 * 160), (2, 2, 160), (0, 2, 8)], [(S_W, 40960)])
    def wdma(ks):
        a(f"s_mul_i32 s{T1}, s{S_W}, 40960\ns_mov_b32 s{T0}, {32 * ks * 1280}")
        for i in range(5):
            a(f"s_add_u32 m0, s{T1}, {(ks % 8) * 5120 + i * 1024}\ns_nop 0")
            a(f"buffer_load_dwordx4 v{vD+i}, s[{S_WO}:{S_WO+3}], s{T0} offen lds")
    W = lambda tl, ks: ar((ks * 5 + tl) * 4, 4)
    for ks in range(8): wdma(ks)
    for ks in range(12):
        a(f"s_waitcnt vmcnt({5 * min(7, 11 - ks)})")
        for tl in range(5):
            for q in range(2): a(f"ds_read_b64_tr_b16 {ar((ks*5+tl)*4+2*q,2)}, v{vTR} offset:{(ks % 8) * 5120 + q * 16 * 160 + tl * 32}")
        a("s_waitcnt lgkmcnt(0)")
        if ks == 0: a("s_barrier"); arrive(a)
        if ks + 8 < 12: wdma(ks + 8)
    census(a)
    AGAIN = c.lab("again")
    a(f"s_barrier\n{AGAIN}:\ns_lshr_b32 s{sY}, s{S_RANK}, 5\ns_sub_u32 s{sY}, s{sY}, 4\ns_and_b32 s{sCS}, s{S_RANK}, 7")
    rtstamp(a, 2)
    vexpr(a, vL, LIN, [(sY, 8 * 12288), (S_W, 2 * 12288), OF])
    PITCH = 336
    vexpr(a, vW, [(2, 2, 8 * PITCH), (0, 2, PITCH), (4, 2, 16)], [(S_W, 32 * PITCH)])
    for k in range(2):
        a(f"v_add_u32 v1, {64*k}, v{LANE}\nv_min_u32 v1, 79, v1\nv_mul_u32_u24 v3, 6554, v1\nv_lshrrev_b32 v3, 16, v3\nv_mul_u32_u24 v{vR+k}, 10, v3\nv_sub_u32 v1, v1, v{vR+k}")
        a(f"s_lshl_b32 s{T0}, s{S_W}, 3\nv_add_u32 v3, s{T0}, v3")
        a(f"v_mul_u32_u24 v{vAt+k}, 160, v3\nv_lshl_add_u32 v{vAt+k}, v1, 4, v{vAt+k}\nv_mul_u32_u24 v{vR+k}, {PITCH}, v3\nv_lshl_add_u32 v{vR+k}, v1, 5, v{vR+k}")
    keep(a, vAt + 1, f"v_cmp_gt_u32 vcc, 16, v{LANE}")
    sbase(a, sFB, [(sY, 8 * 128), (S_W, 2 * 128), F_ATT])
    saddr(a, sA, [(sCS, 2048 * 160), (sY, OP_STRIDE), OP])
    vPG = 16
    vexpr(a, vPG, [(0, 6, 4)], [(S_W, 512), (sY, 128), (sCS, 4), F_O]); keep(a, vPG, f"v_cmp_gt_u32 vcc, 1, v{LANE}")
    a(f"s_mov_b32 s{sS}, 0\ns_mov_b32 s{sO}, 0")
    LOOP = c.lab("loop"); W1 = c.lab("w"); G1 = c.lab("g"); NP = c.lab("np"); BODY = c.lab("b")
    PRE = 5; sPRE = 39
    def flagload():
        a(f"s_and_b32 s{sFO}, s{sS}, 3\ns_lshl_b32 s{sFO}, s{sFO}, 2\ns_add_u32 s{sFO+1}, s{sFO}, 128")
        a(f"s_load_dword s{sV}, s[{sFB}:{sFB+1}], s{sFO} glc\ns_load_dword s{sV+1}, s[{sFB}:{sFB+1}], s{sFO+1} glc")
    def flagtest(): a(f"s_waitcnt lgkmcnt(0)\ns_min_u32 s{T0}, s{sV}, s{sV+1}\ns_cmp_gt_u32 s{T0}, s{sS}")
    sON = 42
    def ld(ks, so=sO):
        for b in range(2):
            k = (ks // 6) * 12 + b * 6 + ks % 6
            a(f"s_add_u32 s{T0}, s{so}, {(k >> 2) * 4096}")
            a(f"buffer_load_dwordx4 {vr(vFR+8*ks+4*b,4)}, v{vL}, {WS}, s{T0} offen offset:{(k & 3) * 1024} sc1")
    prog = f"buffer_store_dword v3, v{vPG}, {WS}, 0 offen sc1"
    a(f"v_mov_b32 v3, 0\n.p2align 6\n{LOOP}:\ns_mov_b32 s{S_TO}, {TIMEOUT}\n{W1}:")
    flagload(); flagtest(); a(f"s_cbranch_scc1 {G1}\ns_sleep 1")
    tmo(a, W1, FAIL)
    a(f"{G1}:")
    for ks in range(PRE): ld(ks)
    a(f"{BODY}:\ns_add_u32 s{sS}, s{sS}, 1")
    for ks in range(12):
        if ks == 2: flagload()
        if ks + PRE == 12:
            flagtest(); a(f"s_cselect_b32 s{sPRE}, 1, 0\ns_add_u32 s{sO}, s{sO}, {32*12288}\ns_cmp_lg_u32 s{sPRE}, 0\ns_cselect_b32 s{sON}, s{sO}, 0x40000000")
        if ks + PRE < 12: ld(ks + PRE)
        else: ld(ks + PRE - 12, sON)
        a(f"s_waitcnt vmcnt({2 * PRE})")
        if ks == PRE: a(prog)
        for tl in range(5):
            for b in range(2):
                d = vr(vAcc + 8 * tl + 4 * b, 4)
                a(f"v_mfma_f32_16x16x32_bf16 {d}, {W(tl, ks)}, {vr(vFR+8*ks+4*b,4)}, {'0' if ks == 0 else d}")
    a("s_barrier")
    nop(a, 6)
    for tl in range(5):
        for b in range(2): a(f"ds_write_b128 v{vW}, {vr(vAcc+8*tl+4*b,4)} offset:{b*4*PITCH + tl*64}")
    a("s_waitcnt lgkmcnt(0)\ns_barrier")
    for k in range(2):
        for p in range(4):
            for h in range(2): a(f"ds_read_b128 {vr(vX+32*k+8*p+4*h,4)}, v{vR+k} offset:{p*32*PITCH+16*h}")
        a("s_waitcnt lgkmcnt(0)")
    for k in range(2):
        b = vX + 32 * k
        for i in range(0, 8, 2): a(f"v_pk_add_f32 {vr(b+i,2)}, {vr(b+i,2)}, {vr(b+8+i,2)}\nv_pk_add_f32 {vr(b+16+i,2)}, {vr(b+16+i,2)}, {vr(b+24+i,2)}")
        for i in range(0, 8, 2): a(f"v_pk_add_f32 {vr(b+i,2)}, {vr(b+i,2)}, {vr(b+16+i,2)}")
        for i in range(4): a(f"v_cvt_pk_bf16_f32 v{b+8+i}, v{b+2*i}, v{b+2*i+1}")
        a(f"buffer_store_dwordx4 {vr(b+8,4)}, v{vAt+k}, {WS}, s{sA} offen sc1")
    a(f"v_mov_b32 v3, s{sS}")
    a(f"s_add_u32 s{sA}, s{sA}, {32*160}\ns_cmp_lg_u32 s{sPRE}, 0\ns_cbranch_scc1 {BODY}\ns_waitcnt vmcnt(0)\n{prog}\ns_cmp_lt_u32 s{sS}, 64\ns_cbranch_scc1 {LOOP}")
    rtstamp(a, 4); mixer(a, AGAIN)
    fail_exit(a, FAIL)
```

```python
import sys
from asmlib import *
from akernel import layer_a_kernel
from small import *
KN = "interleave_layers__memory_aug_recurrent_mem_tr__mixer_token_mlp__prompt"
DEFAULT = dict(oflag=2, pflag=5, sflag=10, preP=40, xrep=4)
def gen(opt=None):
    opt = dict(DEFAULT, **(opt or {}))
    a = Asm()
    hdr = [l.rstrip("\n") for l in open(f"cdna_kernels/{KN}.s.ref") if l.startswith(";") and "launch" not in l.lower() and "Harness parses" not in l] if opt.get("hdr", 1) else []
    a.lines += hdr
    kname = KN + "_kernel"
    a.lines.append("; @launch grid=(256,1,1) block=(256,1,1) lds=163840" if opt.get("hdr", 1) else f"; @launch kernel={kname} grid=(256,1,1) block=(256,1,1) lds=163840")
    a('.amdgcn_target "amdgcn-amd-amdhsa--gfx950"')
    layer_a_kernel(a, [kname], opt)
    return a.text()
if __name__ == "__main__":
    out = sys.argv[1] if len(sys.argv) > 1 else f"cdna_kernels/{KN}.s"
    opt = eval(sys.argv[2]) if len(sys.argv) > 2 else {}
    open(out, "w").write(gen(opt))
```
